```python
import torch

def _softmax(x, axis=-1):
    return torch.softmax(x, dim=axis)

def _gelu(x):
    return torch.nn.functional.gelu(x, approximate='tanh')

def _silu(x):
    return torch.nn.functional.silu(x)

def _sigmoid(x):
    return torch.sigmoid(x)

def _layernorm(x, axis=-1, eps=1e-05):
    m = x.mean(dim=axis, keepdim=True)
    v = x.var(dim=axis, keepdim=True, unbiased=False)
    return (x - m) / torch.sqrt(v + eps)

def _scatter_add(tgt, idx, src, axis=0):
    return tgt.clone().index_add_(axis, idx, src)

def _segment_sum(src, seg, n):
    out = torch.zeros((n,) + src.shape[1:], dtype=src.dtype)
    return out.index_add_(0, seg, src)

def _pad(x, pw):
    flat = tuple((v for pair in reversed(pw) for v in pair))
    return torch.nn.functional.pad(x, flat)
kernel_name = 'adaLN_cond__sliding_block_cached__glu_gated_bilinear__prompt'

def setup_inputs():

    _w = lambda a: (lambda t: t.to(torch.bfloat16) if t.is_floating_point() else t)(torch.as_tensor(a))

    def _A_setup():
        B, Sq, D = (1, 2048, 576)
        Hq, Hkv, Sk, Dh = (32, 16, 2048, 128)
        assert Hq % Hkv == 0, (Hq, Hkv)
        return {'x': _w((lambda *s: torch.randn(*s, dtype=torch.bfloat16) * 0.05)(B, Sq, D)), 'k_cache': _w((lambda *s: torch.randn(*s, dtype=torch.bfloat16) * 1.6)(B, Hkv, Sk, Dh)), 'v_cache': _w((lambda *s: torch.randn(*s, dtype=torch.bfloat16) * 0.8)(B, Hkv, Sk, Dh)), 'wq': _w((lambda *s: torch.randn(*s, dtype=torch.bfloat16) * 1.6)(D, Hq * Dh) * D ** (-0.5)), 'wo': _w((lambda *s: torch.randn(*s, dtype=torch.bfloat16) * 0.8)(Hq * Dh, D) * (Hq * Dh) ** (-0.5))}
    _A_in = _A_setup()

    def _B_setup():
        B, S, D, F = (1, 2048, 576, 4608)
        return {'x': _w((lambda *s: torch.randn(*s, dtype=torch.bfloat16) * 0.05)(B, S, D)), 'w_gate': _w((lambda *s: torch.randn(*s, dtype=torch.bfloat16) * 0.4)(D, F) * D ** (-0.5)), 'w_up': _w((lambda *s: torch.randn(*s, dtype=torch.bfloat16) * 0.4)(D, F) * D ** (-0.5)), 'w_down': _w((lambda *s: torch.randn(*s, dtype=torch.bfloat16) * 0.4)(F, D) * F ** (-0.5))}
    _B_in = _B_setup()
    return {'A_x': _A_in['x'], 'A_k_cache': _A_in['k_cache'], 'A_v_cache': _A_in['v_cache'], 'A_wq': _A_in['wq'], 'A_wo': _A_in['wo'], 'B_x': _B_in['x'], 'B_w_gate': _B_in['w_gate'], 'B_w_up': _B_in['w_up'], 'B_w_down': _B_in['w_down'], 'c': _w((lambda *s: torch.randn(*s, dtype=torch.bfloat16) * 0.2)(1, 576) * 8.0), 'w_mod': _w((lambda *s: torch.randn(*s, dtype=torch.bfloat16) * 0.2)(576, 6 * 576) * 576 ** (-0.5) * 8.0)}

def reference(A_x, A_k_cache, A_v_cache, A_wq, A_wo, B_x, B_w_gate, B_w_up, B_w_down, c, w_mod):

    def _A_ref(x, k_cache, v_cache, wq, wo):
        B, Sq, D = x.shape
        Hq, Dh = (32, 128)
        Hkv, Sk = (k_cache.shape[1], k_cache.shape[2])
        W = min(4096, max(256, Sk // 4))
        rep = Hq // Hkv
        q = (lambda x, *d: x.permute(*d))((x @ wq).reshape(B, Sq, Hq, Dh), 0, 2, 1, 3)
        k = (lambda x, n, axis: torch.repeat_interleave(x, n, dim=axis))(k_cache[:, :, Sk - W:, :], rep, axis=1)
        v = (lambda x, n, axis: torch.repeat_interleave(x, n, dim=axis))(v_cache[:, :, Sk - W:, :], rep, axis=1)
        scores = torch.einsum('bhqd,bhkd->bhqk', q, k) * Dh ** (-0.5)
        p = _softmax(scores, axis=-1)
        o = torch.einsum('bhqk,bhkd->bhqd', p, v)
        return (lambda x, *d: x.permute(*d))(o, 0, 2, 1, 3).reshape(B, Sq, Hq * Dh) @ wo

    def _B_ref(x, w_gate, w_up, w_down):
        g = torch.einsum('bsd,df->bsf', x, w_gate)
        u = torch.einsum('bsd,df->bsf', x, w_up)
        h = g * u
        return torch.einsum('bsf,fd->bsd', h, w_down)
    x = A_x
    mod = (_silu(c) @ w_mod).reshape(c.shape[0], 6, 1, -1)
    sa, ca, ga, sb, cb, gb = (mod[:, 0].clone(), mod[:, 1].clone(), mod[:, 2].clone(), mod[:, 3].clone(), mod[:, 4].clone(), mod[:, 5].clone())
    h = _layernorm(x, axis=-1) * (1 + ca) + sa
    x = x + ga * _A_ref(h, A_k_cache, A_v_cache, A_wq, A_wo)
    h = _layernorm(x, axis=-1) * (1 + cb) + sb
    x = x + gb * _B_ref(h, B_w_gate, B_w_up, B_w_down)
    return x
```

```python
import sys, struct, os

NAME = "adaLN_cond__sliding_block_cached__glu_gated_bilinear__prompt"

WS_MOD = 0x0
WS_H = 0x10000
WS_O = 0x400000
WS_PART = 0x1400000
WS_X1 = 0x2800000
WS_H2 = 0x2C00000
WS_HH = 0x3000000
SZ_X = 2048 * 576 * 2
SZ_PART1 = 2048 * 576 * 4

KA = dict(x=0, k=8, v=16, wq=24, wo=32, wg=48, wu=56, wd=64, c=72, wmod=80, out=88, dbg=96, ws=104)

OPT = dict(
    qscale_in_h=False,
    prof=False,
)


def f2u(f):
    return struct.unpack("<I", struct.pack("<f", f))[0]


def vr(a, n=1):
    return f"v{a}" if n == 1 else f"v[{a}:{a + n - 1}]"


def sr(a, n=1):
    return f"s{a}" if n == 1 else f"s[{a}:{a + n - 1}]"


class Kern:
    def __init__(self, name):
        self.name = name
        self.L = []
        self.tail = []
        self.vm_iss = 0
        self.vm_done = 0
        self.lg_iss = 0
        self.lg_done = 0

    def __call__(self, s):
        self.L.append("    " + s)

    def label(self, l):
        self.L.append(l + ":")

    def vmem(self, s):
        self(s)
        self.vm_iss += 1
        return self.vm_iss

    def lds(self, s):
        self(s)
        self.lg_iss += 1
        return self.lg_iss

    def wait(self, vm=None, lg=None):
        parts = []
        if vm is not None and vm > self.vm_done:
            n = self.vm_iss - vm
            assert 0 <= n
            if n <= 63:
                parts.append(f"vmcnt({n})")
                self.vm_done = vm
            else:
                raise AssertionError("vmcnt overflow")
        if lg is not None and lg > self.lg_done:
            n = self.lg_iss - lg
            assert 0 <= n
            if n > 15:
                n = 15
            parts.append(f"lgkmcnt({n})")
            self.lg_done = self.lg_iss - n
        if parts:
            self("s_waitcnt " + " ".join(parts))

    def wait_all(self):
        self("s_waitcnt vmcnt(0) lgkmcnt(0)")
        self.vm_done = self.vm_iss
        self.lg_done = self.lg_iss

    def load_ptr(self, sdst, key):
        self(f"s_load_dwordx2 {sr(sdst, 2)}, s[0:1], {KA[key]}")

    def srd(self, sd, sptr, size, off=0):
        if off:
            self(f"s_add_u32 s{sd}, s{sptr}, 0x{off:x}")
            self(f"s_addc_u32 s{sd + 1}, s{sptr + 1}, 0")
        elif sd != sptr:
            self(f"s_mov_b32 s{sd}, s{sptr}")
            self(f"s_mov_b32 s{sd + 1}, s{sptr + 1}")
        self(f"s_mov_b32 s{sd + 2}, 0x{size:x}")
        self(f"s_mov_b32 s{sd + 3}, 0x00020000")

    def text(self):
        out = [f".globl {self.name}", ".p2align 8", f".type {self.name},@function", f"{self.name}:"]
        out += self.L
        out += self.tail
        return "\n".join(out) + "\n"

    def desc(self, vgpr, sgpr=96):
        acc = (vgpr + 3) // 4 * 4
        return (f".p2align 6\n.amdhsa_kernel {self.name}\n"
                f"  .amdhsa_next_free_vgpr {vgpr}\n  .amdhsa_next_free_sgpr {sgpr}\n"
                f"  .amdhsa_accum_offset {acc}\n  .amdhsa_group_segment_fixed_size 0\n"
                f"  .amdhsa_kernarg_size 112\n  .amdhsa_user_sgpr_count 2\n"
                f"  .amdhsa_user_sgpr_kernarg_segment_ptr 1\n  .amdhsa_system_sgpr_workgroup_id_x 1\n"
                f".end_amdhsa_kernel\n")


def guard(k, gx):
    k(f"s_cmp_ge_u32 s2, {gx}")
    k(f"s_cbranch_scc1 {k.name}_end")


def finish(k):
    k.label(f"{k.name}_end")
    k("s_endpgm")


def gen_mod():
    k = Kern("mod_kernel")
    guard(k, 54)
    k.load_ptr(4, "wmod")
    k.load_ptr(8, "c")
    k.load_ptr(16, "ws")
    k("v_and_b32 v1, 7, v0")
    k("v_lshrrev_b32 v2, 3, v0")
    k("s_lshl_b32 s3, s2, 7")
    k("s_movk_i32 s20, 6912")
    k("v_mul_lo_u32 v3, v2, s20")
    k("v_lshl_add_u32 v3, v1, 4, v3")
    k("v_add_u32 v3, s3, v3")
    k("v_lshlrev_b32 v4, 1, v2")
    k("s_waitcnt lgkmcnt(0)")
    k.srd(4, 4, 576 * 3456 * 2)
    k.srd(8, 8, 576 * 2)
    k.srd(12, 16, 3456 * 4, WS_MOD)
    W = 32
    C = 8
    cs = []
    ws = []
    for i in range(18):
        cs.append(k.vmem(f"buffer_load_ushort v{C + i}, v4, s[8:11], 0 offen offset:{i * 64}"))
    for i in range(18):
        k(f"s_mov_b32 s21, {i * 32 * 6912}")
        ws.append(k.vmem(f"buffer_load_dwordx4 {vr(W + 4 * i, 4)}, v3, s[4:7], s21 offen"))
    k.wait(vm=cs[-1])
    T = 104
    k(f"s_mov_b32 s22, 0x{f2u(-1.4426950408889634):x}")
    for i in range(18):
        k(f"v_lshlrev_b32 v{C + i}, 16, v{C + i}")
    for i in range(18):
        k(f"v_mul_f32 v{T + i}, s22, v{C + i}")
    for i in range(18):
        k(f"v_exp_f32 v{T + i}, v{T + i}")
    for i in range(18):
        k(f"v_add_f32 v{T + i}, 1.0, v{T + i}")
    for i in range(18):
        k(f"v_rcp_f32 v{T + i}, v{T + i}")
    for i in range(18):
        k(f"v_mul_f32 v{C + i}, v{C + i}, v{T + i}")
    for i in range(18):
        k(f"v_cvt_pk_bf16_f32 v{C + i}, v{C + i}, v{C + i}")
    for i in range(18):
        k(f"v_and_b32 v{C + i}, 0xffff0000, v{C + i}")
    A = 104
    U = 112
    for i in range(18):
        k.wait(vm=ws[i])
        for q in range(4):
            k(f"v_lshlrev_b32 v{U + 2 * q}, 16, v{W + 4 * i + q}")
            k(f"v_and_b32 v{U + 2 * q + 1}, 0xffff0000, v{W + 4 * i + q}")
        for e in range(8):
            if i == 0:
                k(f"v_mul_f32 v{A + e}, v{C + i}, v{U + e}")
            else:
                k(f"v_fmac_f32 v{A + e}, v{C + i}, v{U + e}")
    k("v_lshlrev_b32 v5, 5, v0")
    k.lds(f"ds_write_b128 v5, {vr(A, 4)}")
    k.lds(f"ds_write_b128 v5, {vr(A + 4, 4)} offset:16")
    k("s_waitcnt lgkmcnt(0)")
    k("s_barrier")
    k("v_cmp_gt_u32 vcc, 64, v0")
    k("s_and_saveexec_b64 s[24:25], vcc")
    k(f"s_cbranch_execz {k.name}_end")
    k("v_lshlrev_b32 v5, 2, v0")
    for r in range(32):
        k(f"ds_read_b32 v{W + r}, v5 offset:{r * 256}")
    k("s_waitcnt lgkmcnt(0)")
    n = 32
    while n > 1:
        n //= 2
        for r in range(n):
            k(f"v_add_f32 v{W + r}, v{W + r}, v{W + r + n}")
    k(f"v_cvt_pk_bf16_f32 v{W}, v{W}, v{W}")
    k(f"v_and_b32 v{W}, 0xffff0000, v{W}")
    k("s_mov_b32 s26, 0")
    k("s_sub_u32 s27, s2, 9")
    k("s_cmp_lt_u32 s27, 9")
    k("s_cselect_b32 s26, 1.0, s26")
    k("s_sub_u32 s27, s2, 36")
    k("s_cmp_lt_u32 s27, 9")
    k("s_cselect_b32 s26, 1.0, s26")
    k(f"v_add_f32 v{W}, s26, v{W}")
    k(f"v_cvt_pk_bf16_f32 v{W}, v{W}, v{W}")
    k(f"v_and_b32 v{W}, 0xffff0000, v{W}")
    k("s_lshl_b32 s3, s2, 8")
    k(f"buffer_store_dword v{W}, v5, s[12:15], s3 offen")
    finish(k)
    return k, 128, (54, 256, 8192)


def dpp_sum16(k, v, t):
    for mod in ("quad_perm:[1,0,3,2]", "quad_perm:[2,3,0,1]", "row_half_mirror", "row_mirror"):
        k("s_nop 1")
        k(f"v_add_f32_dpp v{v}, v{v}, v{v} {mod} row_mask:0xf bank_mask:0xf")


def gen_row(mode):
    k = Kern(f"{mode}_kernel")
    guard(k, 256)
    k.load_ptr(4, "x")
    k.load_ptr(6, "ws")
    k.load_ptr(28, "out")
    k("v_and_b32 v1, 15, v0")
    k("v_lshrrev_b32 v2, 4, v0")
    k("s_lshl_b32 s3, s2, 3")
    k("v_add_u32 v2, s3, v2")
    k("s_movk_i32 s30, 1152")
    k("v_mul_lo_u32 v3, v2, s30")
    k("v_lshl_add_u32 v3, v1, 3, v3")
    k("v_lshlrev_b32 v4, 1, v3")
    k("v_lshlrev_b32 v5, 4, v1")
    k("v_lshrrev_b32 v7, 5, v2")
    k("s_mov_b32 s30, 36864")
    k("v_mul_lo_u32 v6, v7, s30")
    k("v_and_b32 v7, 31, v2")
    k("v_lshl_add_u32 v6, v7, 4, v6")
    if mode == "ln1":
        k("v_lshrrev_b32 v7, 1, v1")
        k("v_lshl_add_u32 v6, v7, 9, v6")
        k("v_and_b32 v7, 1, v1")
        k("v_lshl_add_u32 v6, v7, 3, v6")
    else:
        k("v_lshrrev_b32 v7, 3, v1")
        k("v_lshl_add_u32 v6, v7, 11, v6")
        k("v_and_b32 v7, 3, v1")
        k("v_lshl_add_u32 v6, v7, 9, v6")
        k("v_bfe_u32 v7, v1, 2, 1")
        k("v_lshl_add_u32 v6, v7, 3, v6")
    k("s_waitcnt lgkmcnt(0)")
    if mode == "fin":
        k.srd(8, 6, SZ_X, WS_X1)
        k.srd(20, 28, SZ_X)
    else:
        k.srd(8, 4, SZ_X)
        k.srd(20, 6, SZ_X, WS_H if mode == "ln1" else WS_H2)
    k.srd(12, 6, 3456 * 4, WS_MOD)
    k.srd(16, 6, 4 * SZ_PART1, WS_PART)
    k.srd(24, 6, SZ_X, WS_X1)
    X = 8
    P = [28, 64, 100, 136]
    G = 172

    def ldparam(dst, chunk):
        last = None
        k(f"s_movk_i32 s31, {chunk * 2304}")
        for i in range(9):
            last = k.vmem(f"buffer_load_dwordx4 {vr(dst + 4 * i, 4)}, v5, s[12:15], s31 offen offset:{i * 256}")
        return last

    pw = []
    if mode != "ln1":
        for s in range(4):
            k(f"s_mov_b32 s30, {s * SZ_PART1}")
            for i in range(9):
                w = k.vmem(f"buffer_load_dwordx4 {vr(P[s] + 4 * i, 4)}, v4, s[16:19], s30 offen offset:{i * 256}")
            pw.append(w)
    for i in range(9):
        xw = k.vmem(f"buffer_load_dwordx2 {vr(X + 2 * i, 2)}, v3, s[8:11], 0 offen offset:{i * 128}")
    V = P[0]
    if mode == "ln1":
        sw = ldparam(P[1], 0)
        cw = ldparam(P[2], 1)
        k.wait(vm=xw)
        for i in range(18):
            k(f"v_lshlrev_b32 v{V + 2 * i}, 16, v{X + i}")
            k(f"v_and_b32 v{V + 2 * i + 1}, 0xffff0000, v{X + i}")
    else:
        gw = ldparam(G, 2 if mode == "ln2" else 5)
        k.wait(vm=pw[1])
        for e in range(36):
            k(f"v_add_f32 v{P[0] + e}, v{P[0] + e}, v{P[1] + e}")
        k.wait(vm=pw[3])
        for e in range(36):
            k(f"v_add_f32 v{P[2] + e}, v{P[2] + e}, v{P[3] + e}")
        for e in range(36):
            k(f"v_add_f32 v{P[0] + e}, v{P[0] + e}, v{P[2] + e}")
        if mode == "ln2":
            sw = ldparam(P[1], 3)
            cw = ldparam(P[2], 4)
        k.wait(vm=gw)
        U = P[3]
        for i in range(18):
            k(f"v_lshlrev_b32 v{U + 2 * i}, 16, v{X + i}")
            k(f"v_and_b32 v{U + 2 * i + 1}, 0xffff0000, v{X + i}")
        for e in range(36):
            k(f"v_fma_f32 v{V + e}, v{V + e}, v{G + e}, v{U + e}")
        for i in range(18):
            k(f"v_cvt_pk_bf16_f32 v{X + i}, v{V + 2 * i}, v{V + 2 * i + 1}")
        dst = "s[20:23]" if mode == "fin" else "s[24:27]"
        for i in range(9):
            k.vmem(f"buffer_store_dwordx2 {vr(X + 2 * i, 2)}, v3, {dst}, 0 offen offset:{i * 128}")
        if mode == "fin":
            finish(k)
            return k, 208, (256, 128, 0)
        for i in range(18):
            k(f"v_lshlrev_b32 v{V + 2 * i}, 16, v{X + i}")
            k(f"v_and_b32 v{V + 2 * i + 1}, 0xffff0000, v{X + i}")
    A = G
    for q in range(4):
        k(f"v_add_f32 v{A + q}, v{V + q}, v{V + 4 + q}")
    for i in range(2, 9):
        for q in range(4):
            k(f"v_add_f32 v{A + q}, v{A + q}, v{V + 4 * i + q}")
    k(f"v_add_f32 v{A}, v{A}, v{A + 1}")
    k(f"v_add_f32 v{A + 2}, v{A + 2}, v{A + 3}")
    k(f"v_add_f32 v{A}, v{A}, v{A + 2}")
    dpp_sum16(k, A, A + 1)
    k(f"s_mov_b32 s30, 0x{f2u(1.0 / 576):x}")
    k(f"v_mul_f32 v{A}, s30, v{A}")
    for e in range(36):
        k(f"v_sub_f32 v{V + e}, v{V + e}, v{A}")
    for q in range(4):
        k(f"v_mul_f32 v{A + 4 + q}, v{V + q}, v{V + q}")
    for i in range(1, 9):
        for q in range(4):
            k(f"v_fmac_f32 v{A + 4 + q}, v{V + 4 * i + q}, v{V + 4 * i + q}")
    k(f"v_add_f32 v{A + 4}, v{A + 4}, v{A + 5}")
    k(f"v_add_f32 v{A + 6}, v{A + 6}, v{A + 7}")
    k(f"v_add_f32 v{A + 4}, v{A + 4}, v{A + 6}")
    dpp_sum16(k, A + 4, A + 5)
    k(f"v_mov_b32 v{A + 5}, 0x{f2u(1e-5):x}")
    k(f"v_fmac_f32 v{A + 5}, s30, v{A + 4}")
    k(f"v_rsq_f32 v{A + 5}, v{A + 5}")
    k("s_nop 0")
    for e in range(36):
        k(f"v_mul_f32 v{V + e}, v{V + e}, v{A + 5}")
    k.wait(vm=cw)
    for e in range(36):
        k(f"v_fma_f32 v{V + e}, v{V + e}, v{P[2] + e}, v{P[1] + e}")
    if mode == "ln1" and OPT["qscale_in_h"]:
        k(f"s_mov_b32 s30, 0x{f2u(QSCALE):x}")
        for e in range(36):
            k(f"v_mul_f32 v{V + e}, s30, v{V + e}")
    O = G + 8
    for i in range(18):
        k(f"v_cvt_pk_bf16_f32 v{O + i}, v{V + 2 * i}, v{V + 2 * i + 1}")
    for i in range(9):
        k(f"s_mov_b32 s30, {i * 4096}")
        k.vmem(f"buffer_store_dwordx2 {vr(O + 2 * i, 2)}, v6, s[20:23], s30 offen")
    finish(k)
    return k, 208, (256, 128, 0)


QSCALE = (128 ** -0.5) * 1.4426950408889634


class Step:
    def __init__(self, group, reads, mfma, pre_read=None, pre=None):
        self.group = group
        self.reads = reads
        self.mfma = mfma
        self.pre = pre or []
        self.valu = []
        self.slots = []


def run_stream(k, steps, FR, NFR, LOOK, group_cover, on_sync, dma_per_step=1):
    synced = set()
    queue = []
    rseq = {}
    N = len(steps)
    k.slot_last_read = {}
    for n in range(-LOOK, N):
        m = n + LOOK
        if m < N:
            st = steps[m]
            if st.group not in synced:
                while queue and group_cover.get(st.group) is None:
                    queue.pop(0)()
                assert group_cover.get(st.group) is not None, st.group
                k.wait(vm=group_cover[st.group])
                k("s_barrier")
                synced.add(st.group)
                queue += on_sync(st.group, n)
            dst = FR + 4 * (m % NFR)
            last = None
            for ins in st.reads(dst):
                if ins.startswith("ds_"):
                    last = k.lds(ins)
                else:
                    k(ins)
            rseq[m] = last
            for s in st.slots:
                k.slot_last_read[s] = last
        if n >= 0:
            st = steps[n]
            k.wait(lg=rseq[n])
            for p in st.pre:
                if callable(p):
                    p()
                else:
                    k(p)
            for ins in st.mfma(FR + 4 * (n % NFR)):
                k(ins)
            k.cur_step = n
            for _ in range(dma_per_step):
                if queue:
                    queue.pop(0)()
            for p in st.valu:
                if callable(p):
                    p()
                else:
                    k(p)
    assert not queue


def spread(steps, first, last, items):
    total = sum(c for _, c in items)
    n = last - first + 1
    acc = 0.0
    for ins, c in items:
        idx = first + min(n - 1, int((acc + c * 0.5) * n / total))
        steps[idx].valu.append(ins)
        acc += c


def gen_attn():
    k = Kern("attn_kernel")
    O, NEGM, SA, SB, QF, FR = 0, 64, 80, 112, 144, 176
    KAD, VAD, WAD = 208, 216, 220
    L0, L1, MX0, MX1, ALPHA, TMP = 224, 225, 226, 227, 228, 229
    DK0, DK1, DV, DW0, DW1, LIN = 230, 231, 232, 233, 234, 235
    NV = 236
    SLOT = 16384
    NSLOT = 10
    guard(k, 256)
    k.load_ptr(4, "wq")
    k.load_ptr(8, "k")
    k.load_ptr(12, "v")
    k.load_ptr(32, "ws")
    T = FR
    k(f"v_lshrrev_b32 v{T}, 6, v0")
    k(f"v_and_b32 v{T + 1}, 63, v0")
    k(f"v_readfirstlane_b32 s24, v{T}")
    ln = T + 1
    k("s_and_b32 s34, s2, 6")
    k("s_lshl_b32 s34, s34, 2")
    k("s_bfe_u32 s35, s2, 0x30003")
    k("s_add_u32 s34, s34, s35")
    k("s_and_b32 s35, s2, 1")
    k("s_lshl_b32 s35, s35, 2")
    k("s_lshr_b32 s36, s2, 6")
    k("s_add_u32 s35, s35, s36")
    k("s_lshl_b32 s35, s35, 3")
    k("s_add_u32 s35, s35, s24")
    k("s_lshl_b32 s25, s24, 11")
    k("s_mul_i32 s26, s35, 36864")
    k("s_lshr_b32 s27, s34, 1")
    k("s_lshl_b32 s27, s27, 19")
    k(f"s_add_u32 s27, s27, {1536 * 256}")
    k("s_lshl_b32 s28, s35, 18")
    k("s_lshl_b32 s36, s34, 13")
    k("s_add_u32 s28, s28, s36")
    k("s_mov_b32 s29, 0")
    G4, P16, R8 = T + 2, T + 3, T + 4
    k(f"v_lshrrev_b32 v{G4}, 4, v{ln}")
    k(f"v_and_b32 v{P16}, 15, v{ln}")
    k(f"v_lshlrev_b32 v{LIN}, 4, v{ln}")
    k("s_lshl_b32 s36, s24, 3")
    k(f"v_add_u32 v{R8}, s36, v{G4}")
    a, b = T + 5, T + 6
    k(f"v_lshlrev_b32 v{a}, 2, v{G4}")
    k(f"v_xor_b32 v{a}, v{a}, v{P16}")
    k(f"v_lshlrev_b32 v{a}, 4, v{a}")
    k(f"v_lshl_add_u32 v{DV}, v{R8}, 8, v{a}")
    k(f"v_lshl_add_u32 v{DW0}, v{R8}, 13, v{a}")
    k("s_lshl_b32 s36, s34, 8")
    k(f"v_add_u32 v{DW0}, s36, v{DW0}")
    k(f"v_add_u32 v{DW1}, {32768 - 1024}, v{DW0}")
    k(f"v_and_b32 v{a}, 15, v{R8}")
    k(f"v_xor_b32 v{a}, v{a}, v{P16}")
    k(f"v_lshlrev_b32 v{a}, 4, v{a}")
    k(f"v_lshl_add_u32 v{DK0}, v{R8}, 8, v{a}")
    k(f"v_xor_b32 v{DK1}, 64, v{DK0}")
    HF = T + 7
    k(f"v_lshrrev_b32 v{HF}, 5, v{ln}")
    k(f"v_xor_b32 v{a}, v{HF}, v{P16}")
    k(f"v_lshlrev_b32 v{a}, 4, v{a}")
    k(f"v_and_b32 v{b}, 31, v{ln}")
    k(f"v_lshl_add_u32 v{KAD}, v{b}, 8, v{a}")
    for s in range(1, 8):
        k(f"v_xor_b32 v{KAD + s}, {s << 5}, v{KAD}")
    R, C, DS = T + 8, T + 9, T + 10
    k(f"v_bfe_u32 v{R}, v{ln}, 2, 2")
    k(f"v_and_b32 v{C}, 3, v{ln}")
    k(f"v_bfe_u32 v{DS}, v{ln}, 4, 1")
    k(f"v_mul_u32_u24 v{a}, {256 + 64}, v{R}")
    k(f"v_lshl_add_u32 v{a}, v{DS}, 5, v{a}")
    k(f"v_lshl_add_u32 v{VAD}, v{HF}, 10, v{a}")
    k(f"v_lshl_add_u32 v{VAD}, v{C}, 3, v{VAD}")
    k(f"v_lshl_add_u32 v{WAD}, v{HF}, 11, v{a}")
    k(f"v_and_b32 v{b}, 1, v{C}")
    k(f"v_lshl_add_u32 v{WAD}, v{b}, 4, v{WAD}")
    k(f"v_lshrrev_b32 v{b}, 1, v{C}")
    k(f"v_lshl_add_u32 v{WAD}, v{b}, 3, v{WAD}")
    for t in range(1, 4):
        k(f"v_xor_b32 v{VAD + t}, {t << 6}, v{VAD}")
        k(f"v_xor_b32 v{WAD + t}, {t << 6}, v{WAD}")
    k(f"v_mov_b32 v{L0}, 0")
    k(f"v_mov_b32 v{L1}, 0")
    k("s_waitcnt lgkmcnt(0)")
    k.srd(4, 4, 576 * 4096 * 2)
    k.srd(8, 8, 16 * 2048 * 128 * 2)
    k.srd(12, 12, 16 * 2048 * 128 * 2)
    k.srd(16, 32, SZ_X, WS_H)
    k.srd(20, 32, 2048 * 4096 * 2, WS_O)

    slots = [("W", s) for s in range(9)] + [("K", 0), ("K", 1)]
    for i in range(6):
        slots += [("V", i), ("K", i + 2)]
    slots += [("V", 6), ("V", 7)]
    sidx = {s: i for i, s in enumerate(slots)}
    groups = [[i] for i in range(9)] + [[9 + 2 * g, 10 + 2 * g] for g in range(8)]
    gof = {}
    for g, ss in enumerate(groups):
        for s in ss:
            gof[s] = g
    cover = {}
    h_last_use = {}

    def issue_ops(g):
        ops = []
        for idx in groups[g]:
            kind, c = slots[idx]
            pos = idx % NSLOT

            def mk(kind=kind, c=c, pos=pos, u=0, idx=idx):
                def f():
                    k(f"s_add_u32 m0, s25, {pos * SLOT}")
                    if kind == "W":
                        k(f"s_mov_b32 s30, {c * 64 * 8192}")
                        va, srd = (DW0, DW1)[u], "s[4:7]"
                    else:
                        k(f"s_add_u32 s30, s27, {c * 16384}")
                        if kind == "K":
                            va, srd = (DK0, DK1)[u], "s[8:11]"
                        else:
                            va, srd = DV, "s[12:15]"
                    off = " offset:1024" if u else ""
                    return k.vmem(f"buffer_load_dwordx4 v{va}, {srd}, s30 offen{off} lds")
                return f
            ops.append(mk(u=0))
            ops.append(mk(u=1))
            if kind == "W":
                for ks in range(4):
                    def fh(c=c, ks=ks):
                        if c >= 5:
                            assert k.cur_step >= h_last_use[c - 5], (c, k.cur_step)
                        k(f"s_add_u32 s31, s26, {c * 4096}")
                        return k.vmem(f"buffer_load_dwordx4 {vr(16 * (c % 5) + 4 * ks, 4)}, v{LIN}, s[16:19], s31 offen offset:{ks * 1024}")
                    ops.append(fh)
        last = ops[-1]

        def fin():
            cover[g] = last()
        return ops[:-1] + [fin]

    def on_sync(g, n):
        tgt = g + 3
        if g < 2 or tgt >= len(groups):
            return []
        for idx in groups[tgt]:
            old = idx - NSLOT
            if old >= 0:
                assert old in k.slot_last_read and k.slot_last_read[old] <= k.lg_done, (g, idx)
                assert all(old not in st.slots for st in steps[max(0, n + LOOK):]), (g, idx)
        return issue_ops(tgt)

    bias = {"K": 0, "V": 0, "W": 0}
    setregs = {"K": (KAD, 8), "V": (VAD, 4), "W": (WAD, 4)}

    def fix_bias(kind, base):
        out = []
        if not (bias[kind] <= base and base + SLOT <= bias[kind] + 65536):
            d = base - bias[kind]
            r0, n = setregs[kind]
            for i in range(n):
                if d > 0:
                    out.append(f"v_add_u32 v{r0 + i}, {d}, v{r0 + i}")
                else:
                    out.append(f"v_subrev_u32 v{r0 + i}, {-d}, v{r0 + i}")
            bias[kind] = base
        return out

    def tr_reads(kind, idx, t, row0, estep):
        def f(dst):
            base = (idx % NSLOT) * SLOT
            out = fix_bias(kind, base)
            r0 = setregs[kind][0]
            for e in range(2):
                off = base - bias[kind] + (row0 + estep * e) * 256
                out.append(f"ds_read_b64_tr_b16 {vr(dst + 2 * e, 2)}, v{r0 + t} offset:{off}")
            return out
        return f

    def k_reads(idx, j, s):
        def f(dst):
            base = (idx % NSLOT) * SLOT
            out = fix_bias("K", base)
            off = base - bias["K"] + j * 8192
            out.append(f"ds_read_b128 {vr(dst, 4)}, v{KAD + s} offset:{off}")
            return out
        return f

    MF = "v_mfma_f32_32x32x16_bf16"
    steps = []
    LOOK = 6
    for s in range(9):
        idx = sidx[("W", s)]
        for ks in range(4):
            for t in range(4):
                d = vr(SA + 16 * t, 16)
                c = "0" if (s == 0 and ks == 0) else d
                hb = vr(16 * (s % 5) + 4 * ks, 4)
                st = Step(gof[idx], tr_reads("W", idx, t, 16 * ks, 4),
                          lambda fr, d=d, c=c, hb=hb: [f"{MF} {d}, {vr(fr, 4)}, {hb}, {c}"])
                st.slots = [idx]
                steps.append(st)
        h_last_use[s] = len(steps) - 1

    def qk_steps(c):
        idx = sidx[("K", c)]
        S = SA if c % 2 == 0 else SB
        first = len(steps)
        for s in range(8):
            for j in range(2):
                d = vr(S + 16 * j, 16)
                cc = d if s else ("0" if c < 2 else vr(NEGM, 16))
                st = Step(gof[idx], k_reads(idx, j, s),
                          lambda fr, d=d, cc=cc, s=s: [f"{MF} {d}, {vr(fr, 4)}, {vr(QF + 4 * s, 4)}, {cc}"])
                st.slots = [idx]
                steps.append(st)
        return first

    def pv_steps(c):
        idx = sidx[("V", c)]
        S = SA if c % 2 == 0 else SB
        first = len(steps)
        for kk in range(4):
            for t in range(4):
                d = vr(O + 16 * t, 16)
                cc = "0" if (c == 0 and kk == 0) else d
                pb = vr(S + 8 * kk, 4)
                st = Step(gof[idx], tr_reads("V", idx, t, 16 * kk, 8),
                          lambda fr, d=d, cc=cc, pb=pb: [f"{MF} {d}, {vr(fr, 4)}, {pb}, {cc}"])
                st.slots = [idx]
                steps.append(st)
        return first

    def max_ops(S):
        it = [(f"v_max3_f32 v{MX0}, v{S}, v{S + 1}, v{S + 2}", 1), (f"v_max3_f32 v{MX1}, v{S + 3}, v{S + 4}, v{S + 5}", 1)]
        for q in range(13):
            m = (MX0, MX1)[q % 2]
            it.append((f"v_max3_f32 v{m}, v{m}, v{S + 6 + 2 * q}, v{S + 7 + 2 * q}", 1))
        it.append((f"v_max_f32 v{MX0}, v{MX0}, v{MX1}", 1))
        return it

    def exp_ops(S):
        it = []
        for g in range(4):
            b = S + 8 * g
            for e in range(8):
                it.append((f"v_exp_f32 v{b + e}, v{b + e}", 2))
            for e in range(8):
                l = (L0, L1)[e % 2]
                it.append((f"v_add_f32 v{l}, v{l}, v{b + e}", 1))
            for e in range(4):
                it.append((f"v_cvt_pk_bf16_f32 v{b + e}, v{b + 2 * e}, v{b + 2 * e + 1}", 1))
        return it

    def xhalf_max():
        return [(f"v_mov_b32 v{MX1}, v{MX0}", 1), ("s_nop 1", 1), (f"v_permlane32_swap_b32 v{MX0}, v{MX1}", 1),
                ("s_nop 1", 1), (f"v_max_f32 v{MX0}, v{MX0}, v{MX1}", 1)]

    THR = f2u(30.0)

    def check_ops(c):
        S = SA if c % 2 == 0 else SB

        def f():
            k(f"v_cmp_lt_f32 vcc, 0x{THR:x}, v{MX0}")
            k(f"s_cbranch_vccnz attn_slow{c}")
            k.label(f"attn_back{c}")
            t = k.tail
            t.append(f"attn_slow{c}:")
            for ins, _ in xhalf_max():
                t.append("    " + ins)
            t.append(f"    v_max_f32 v{MX0}, 0, v{MX0}")
            for e in range(32):
                t.append(f"    v_sub_f32 v{S + e}, v{S + e}, v{MX0}")
            for e in range(16):
                t.append(f"    v_sub_f32 v{NEGM + e}, v{NEGM + e}, v{MX0}")
            t.append(f"    v_exp_f32_e64 v{ALPHA}, -v{MX0}")
            t.append("    s_mov_b32 s29, 1")
            t.append(f"    v_mul_f32 v{L0}, v{L0}, v{ALPHA}")
            t.append(f"    v_mul_f32 v{L1}, v{L1}, v{ALPHA}")
            t.append("    s_nop 1")
            t.append(f"    s_branch attn_back{c}")
        return [(f, 1)]

    def resc_op(c):
        def f():
            k("s_cmp_lg_u32 s29, 0")
            k(f"s_cbranch_scc1 attn_resc{c}")
            k.label(f"attn_rback{c}")
            t = k.tail
            t.append(f"attn_resc{c}:")
            t.append("    s_nop 15")
            for e in range(64):
                t.append(f"    v_mul_f32 v{O + e}, v{O + e}, v{ALPHA}")
            t.append("    s_mov_b32 s29, 0")
            t.append("    s_nop 1")
            t.append(f"    s_branch attn_rback{c}")
        return f

    q0 = qk_steps(0)

    def qconv():
        k("s_nop 15")
        if not OPT["qscale_in_h"]:
            k(f"s_mov_b32 s36, 0x{f2u(QSCALE):x}")
            for e in range(64):
                k(f"v_mul_f32 v{SA + e}, s36, v{SA + e}")
        for e in range(32):
            k(f"v_cvt_pk_bf16_f32 v{QF + e}, v{SA + 2 * e}, v{SA + 2 * e + 1}")
        k("s_nop 1")
    steps[q0].pre.append(qconv)
    q1 = qk_steps(1)
    it = max_ops(SA) + xhalf_max()
    it += [(f"v_sub_f32 v{NEGM + e}, 0, v{MX0}", 1) for e in range(16)]
    it += [(f"v_sub_f32 v{SA + e}, v{SA + e}, v{MX0}", 1) for e in range(32)]
    it += exp_ops(SA) + [("s_nop 1", 0)]
    spread(steps, q1 + 1, q1 + 15, it)
    for i in range(7):
        c = i + 1
        S = SA if c % 2 == 0 else SB
        p = pv_steps(i)
        it = []
        if c == 1:
            it += [(f"v_add_f32 v{S + e}, v{S + e}, v{NEGM}", 1) for e in range(32)]
        it += max_ops(S) + check_ops(c)
        nchk = len(it)
        it += exp_ops(S) + [("s_nop 1", 0)]
        if i < 6:
            q = qk_steps(i + 2)
            spread(steps, p + 1, q + 15, it)
            chk = it[nchk - 1][0]
            assert any(chk in steps[x].valu for x in range(p, p + 15)), c
            steps[q + 3].valu.insert(0, resc_op(c))
        else:
            spread(steps, p + 1, p + 15, it)
            steps[p + 15].valu.append(resc_op(c))
    pv_steps(7)

    k.cur_step = -1
    for g in range(5):
        for f in issue_ops(g):
            f()
    run_stream(k, steps, FR, 8, LOOK, cover, on_sync)

    k(f"v_add_f32 v{L0}, v{L0}, v{L1}")
    k(f"v_mov_b32 v{L1}, v{L0}")
    k("s_nop 1")
    k(f"v_permlane32_swap_b32 v{L0}, v{L1}")
    k("s_nop 1")
    k(f"v_add_f32 v{L0}, v{L0}, v{L1}")
    k(f"v_rcp_f32 v{L0}, v{L0}")
    k("s_add_u32 s30, s28, 4096")
    k("s_nop 12")
    for t in range(4):
        b = O + 16 * t
        for e in range(16):
            k(f"v_mul_f32 v{b + e}, v{b + e}, v{L0}")
        for sec in range(2):
            d = SA + 8 * t + 4 * sec
            k(f"v_cvt_pk_bf16_f32 v{d}, v{b + 4 * sec}, v{b + 4 * sec + 1}")
            k(f"v_cvt_pk_bf16_f32 v{d + 1}, v{b + 4 * sec + 2}, v{b + 4 * sec + 3}")
            k(f"v_cvt_pk_bf16_f32 v{d + 2}, v{b + 8 + 4 * sec}, v{b + 8 + 4 * sec + 1}")
            k(f"v_cvt_pk_bf16_f32 v{d + 3}, v{b + 8 + 4 * sec + 2}, v{b + 8 + 4 * sec + 3}")
            so = "s28" if t < 2 else "s30"
            k.vmem(f"buffer_store_dwordx4 {vr(d, 4)}, v{LIN}, s[20:23], {so} offen offset:{(t & 1) * 2048 + sec * 1024}")
    finish(k)
    return k, NV, (256, 512, NSLOT * SLOT)


def gen_gemm(mode):
    k = Kern(f"{mode}_kernel")
    glu = mode == "glu"
    NM = 2 if glu else 1
    Ktot = {"oproj": 4096, "down": 4608, "glu": 576}[mode]
    NST = {"oproj": 8, "down": 9, "glu": 9}[mode]
    WROW = 9216 if glu else 1152
    KC = Ktot // 8
    SLOT = 36864
    ACC = 0
    AF = 72 * NM
    FR = AF + 64
    BA = FR + 32
    DA = BA + 4
    AV0, AV1 = DA + 5, DA + 6
    NV = DA + 7
    guard(k, 256)
    if glu:
        k.load_ptr(4, "wg")
        k.load_ptr(6, "wu")
    else:
        k.load_ptr(4, "wo" if mode == "oproj" else "wd")
    k.load_ptr(32, "ws")
    T = 0
    k("v_lshrrev_b32 v1, 6, v0")
    k("v_and_b32 v2, 63, v0")
    k("v_readfirstlane_b32 s24, v1")
    ln = 2
    k("s_and_b32 s34, s2, 7")
    k("s_lshr_b32 s35, s2, 3")
    if glu:
        k("s_lshr_b32 s36, s34, 1")
        k("s_lshl_b32 s36, s36, 3")
        k("s_and_b32 s37, s35, 7")
        k("s_add_u32 s36, s36, s37")
        k("s_and_b32 s37, s34, 1")
        k("s_lshl_b32 s37, s37, 2")
        k("s_lshr_b32 s38, s35, 3")
        k("s_add_u32 s37, s37, s38")
        k("s_lshl_b32 s37, s37, 3")
        k("s_add_u32 s37, s37, s24")
        k(f"s_mul_i32 s26, s37, {KC * 512}")
        k("s_and_b32 s38, s24, 3")
        k("s_mov_b32 s39, 0")
        k("s_mov_b32 s27, 0")
    else:
        k("s_lshr_b32 s40, s34, 1")
        k("s_and_b32 s36, s35, 3")
        k("s_and_b32 s37, s34, 1")
        k("s_lshl_b32 s37, s37, 3")
        k("s_lshr_b32 s38, s35, 2")
        k("s_add_u32 s37, s37, s38")
        k("s_lshl_b32 s37, s37, 2")
        k("s_and_b32 s38, s24, 3")
        k("s_add_u32 s37, s37, s38")
        k("s_lshr_b32 s39, s24, 2")
        k(f"s_mul_i32 s26, s37, {KC * 512}")
        k(f"s_mul_i32 s41, s40, {NST * 4 * 2048}")
        k("s_add_u32 s26, s26, s41")
        k("s_lshl_b32 s41, s39, 12")
        k("s_add_u32 s26, s26, s41")
        k(f"s_mul_i32 s27, s40, {NST * 128 * WROW}")
        k("s_mov_b32 s38, s24")
    k("s_mul_i32 s25, s24, 4608")
    k(f"s_mul_i32 s41, s38, {16 * WROW}")
    k("s_mul_i32 s42, s36, 288")
    k("s_add_u32 s41, s41, s42")
    k(f"s_mov_b32 s42, {WROW}")
    for u in range(5):
        k(f"v_add_u32 v3, {64 * u}, v{ln}")
        k("v_mul_u32_u24 v4, 3641, v3")
        k("v_lshrrev_b32 v4, 16, v4")
        k("v_mul_u32_u24 v5, 18, v4")
        k("v_sub_u32 v5, v3, v5")
        k("v_mul_lo_u32 v4, v4, s42")
        k("v_lshl_add_u32 v4, v5, 4, v4")
        k(f"v_add_u32 v{DA + u}, s41, v4")
        if 0 < u < 4:
            k(f"v_subrev_u32 v{DA + u}, {1024 * u}, v{DA + u}")
    k(f"v_lshrrev_b32 v3, 2, v{ln}")
    k("v_mul_u32_u24 v3, 288, v3")
    k(f"v_and_b32 v4, 3, v{ln}")
    k("v_lshl_add_u32 v3, v4, 3, v3")
    k("s_mul_i32 s41, s39, 18432")
    k(f"v_add_u32 v{BA}, s41, v3")
    for s in range(1, 4):
        k(f"v_add_u32 v{BA + s}, {s * SLOT}, v{BA}")
    k(f"v_lshrrev_b32 v3, 4, v{ln}")
    k(f"v_and_b32 v4, 15, v{ln}")
    k("v_lshlrev_b32 v4, 4, v4")
    k("v_lshl_add_u32 v3, v3, 9, v4")
    k("s_lshl_b32 s41, s39, 8")
    k(f"v_add_u32 v{AV0}, s41, v3")
    k(f"v_xor_b32 v{AV1}, 0x100, v{AV0}")
    k("s_waitcnt lgkmcnt(0)")
    if glu:
        k("s_cmp_ge_u32 s24, 4")
        k("s_cselect_b32 s4, s6, s4")
        k("s_cselect_b32 s5, s7, s5")
        k.srd(4, 4, 576 * 4608 * 2)
        k.srd(16, 32, SZ_X, WS_H2)
        k.srd(20, 32, 2048 * 4608 * 2, WS_HH)
    else:
        k.srd(4, 4, Ktot * 576 * 2)
        k.srd(16, 32, 2048 * Ktot * 2, WS_O if mode == "oproj" else WS_HH)
        k.srd(20, 32, 4 * SZ_PART1, WS_PART)

    cover = {}
    a_last_use = {}
    wstep = (64 if glu else 128) * WROW
    astep = 4096 if glu else 8192

    def issue_ops(g):
        ops = []
        pos = g % 4
        for u in range(5):
            def f(u=u):
                k(f"s_add_u32 m0, s25, {pos * SLOT + (4096 if u == 4 else 0)}")
                k(f"s_add_u32 s30, s27, {g * wstep}")
                if u == 4:
                    k("s_mov_b32 exec_hi, 0")
                off = f" offset:{1024 * u}" if 0 < u < 4 else ""
                r = k.vmem(f"buffer_load_dwordx4 v{DA + u}, s[4:7], s30 offen{off} lds")
                if u == 4:
                    k("s_mov_b32 exec_hi, -1")
                return r
            ops.append(f)
        for ks in range(2):
            for mt in range(2):
                def fa(ks=ks, mt=mt):
                    if g >= 4:
                        assert k.cur_step >= a_last_use[g - 4]
                    k(f"s_add_u32 s31, s26, {g * astep}")
                    d = AF + 16 * pos + 8 * ks + 4 * mt
                    return k.vmem(f"buffer_load_dwordx4 {vr(d, 4)}, v{(AV0, AV1)[mt]}, s[16:19], s31 offen offset:{ks * 2048}")
                ops.append(fa)
        last = ops[-1]

        def fin():
            cover[g] = last()
        return ops[:-1] + [fin]

    LOOK = 6

    def on_sync(g, n):
        tgt = g + 2
        if g < 2 or tgt >= NST:
            return []
        old = tgt - 4
        assert k.slot_last_read[old] <= k.lg_done
        return issue_ops(tgt)

    MF = "v_mfma_f32_16x16x32_bf16"
    steps = []
    for g in range(NST):
        pos = g % 4
        for ks in range(2):
            for mat in range(NM):
                for nt in range(9):
                    def rd(dst, pos=pos, ks=ks, mat=mat, nt=nt):
                        return [f"ds_read_b64_tr_b16 {vr(dst + 2 * e, 2)}, v{BA + pos} offset:{mat * 18432 + (32 * ks + 16 * e) * 288 + nt * 32}"
                                for e in range(2)]

                    def mf(fr, g=g, pos=pos, ks=ks, mat=mat, nt=nt):
                        out = []
                        for mt in range(2):
                            d = vr(ACC + 72 * mat + 36 * mt + 4 * nt, 4)
                            c = "0" if (g == 0 and ks == 0) else d
                            out.append(f"{MF} {d}, {vr(fr, 4)}, {vr(AF + 16 * pos + 8 * ks + 4 * mt, 4)}, {c}")
                        return out
                    st = Step(g, rd, mf)
                    st.slots = [g]
                    steps.append(st)
        a_last_use[g] = len(steps) - 1

    k.cur_step = -1
    for g in range(4):
        for f in issue_ops(g):
            f()
    run_stream(k, steps, FR, 8, LOOK, cover, on_sync)

    k("s_nop 7")
    if glu:
        for e in range(72):
            k(f"v_mul_f32 v{e}, v{e}, v{72 + e}")
        k(f"s_mul_i32 s30, s37, {576 * 512}")
        k("s_mul_i32 s41, s36, 9")
        k("s_lshr_b32 s41, s41, 1")
        k("s_lshl_b32 s41, s41, 11")
        k("s_add_u32 s30, s30, s41")
        k("s_add_u32 s31, s30, 4096")
        k("s_add_u32 s42, s30, 8192")
        k("s_bitcmp1_b32 s36, 0")
        k("s_cbranch_scc1 glu_odd")
        for par in range(2):
            if par:
                k.label("glu_odd")
            for mt in range(2):
                P = 72 + 20 * mt
                for nt in range(9):
                    src = 36 * mt + 4 * nt
                    d = P + 2 * (nt + par)
                    k(f"v_cvt_pk_bf16_f32 v{d}, v{src}, v{src + 1}")
                    k(f"v_cvt_pk_bf16_f32 v{d + 1}, v{src + 2}, v{src + 3}")
                for blk in range(5):
                    so = ("s30", "s31", "s42")[blk >> 1]
                    off = (blk & 1) * 2048
                    va = (AV0, AV1)[mt]
                    if par == 0 and blk == 4:
                        k(f"buffer_store_dwordx2 {vr(P + 16, 2)}, v{va}, s[20:23], {so} offen offset:{off}")
                    elif par == 1 and blk == 0:
                        k(f"buffer_store_dwordx2 {vr(P + 2, 2)}, v{va}, s[20:23], {so} offen offset:{off + 8}")
                    else:
                        k(f"buffer_store_dwordx4 {vr(P + 4 * blk, 4)}, v{va}, s[20:23], {so} offen offset:{off}")
            if par == 0:
                k("s_endpgm")
    else:
        xb = ((NST - 4) % 4) * SLOT
        assert ((NST - 3) % 4) * SLOT == xb + SLOT
        k("v_mbcnt_lo_u32_b32 v72, -1, 0")
        k("v_mbcnt_hi_u32_b32 v72, -1, v72")
        k("v_lshlrev_b32 v73, 4, v72")
        k(f"s_mul_i32 s41, s24, 9216")
        k(f"s_add_u32 s41, s41, {xb}")
        k("v_add_u32 v74, s41, v73")
        k("s_xor_b32 s42, s24, 4")
        k(f"s_mul_i32 s42, s42, 9216")
        k(f"s_add_u32 s42, s42, {xb}")
        k("v_add_u32 v75, s42, v73")
        for nt in range(9):
            k.lds(f"ds_write_b128 v74, {vr(36 + 4 * nt, 4)} offset:{nt * 1024}")
        k("v_and_b32 v76, 15, v72")
        k("v_mul_u32_u24 v76, 2304, v76")
        k("v_lshrrev_b32 v77, 4, v72")
        k("v_lshl_add_u32 v76, v77, 4, v76")
        k("s_lshl_b32 s41, s37, 1")
        k("s_add_u32 s41, s41, s39")
        k(f"s_mul_i32 s41, s41, {16 * 2304}")
        k("s_mul_i32 s42, s36, 576")
        k("s_add_u32 s41, s41, s42")
        k(f"s_mul_i32 s42, s40, {SZ_PART1}")
        k("s_add_u32 s41, s41, s42")
        k("s_waitcnt lgkmcnt(0)")
        k.lg_done = k.lg_iss
        k("s_barrier")
        rs = []
        for nt in range(9):
            rs.append(k.lds(f"ds_read_b128 {vr(80 + 4 * nt, 4)}, v75 offset:{nt * 1024}"))
        for nt in range(9):
            k.wait(lg=rs[nt])
            for e in range(4):
                k(f"v_add_f32 v{4 * nt + e}, v{4 * nt + e}, v{80 + 4 * nt + e}")
            k(f"buffer_store_dwordx4 {vr(4 * nt, 4)}, v76, s[20:23], s41 offen offset:{nt * 64}")
    finish(k)
    return k, NV, (256, 512, 4 * SLOT)


def main():
    out = sys.argv[1] if len(sys.argv) > 1 else f"cdna_kernels/{NAME}.s"
    for a in sys.argv[2:]:
        key, val = a.split("=")
        OPT[key] = eval(val)
    ref = open(f"cdna_kernels/{NAME}.s.ref").read().split("\n")
    head = [l for l in ref if l.startswith(";") and "@launch" not in l]
    ks = [gen_mod(), gen_row("ln1"), gen_attn(), gen_gemm("oproj"), gen_row("ln2"), gen_gemm("glu"),
          gen_gemm("down"), gen_row("fin")]
    s = "\n".join(head) + "\n"
    for k, nv, (gx, bx, lds) in ks:
        s += f"; @launch kernel={k.name} grid=({gx},1,1) block=({bx},1,1) lds={lds}\n"
    s += '.amdgcn_target "amdgcn-amd-amdhsa--gfx950"\n.text\n'
    for k, nv, _ in ks:
        s += k.text()
    s += '.section .rodata,"a"\n'
    for k, nv, _ in ks:
        s += k.desc(nv)
    open(out, "w").write(s)
    print("wrote", out, len(s), "bytes")


if __name__ == "__main__":
    main()
```

```python
import sys, struct, os

NAME = "adaLN_cond__sliding_block_cached__glu_gated_bilinear__prompt"

WS_MOD = 0x0
WS_H = 0x10000
WS_O = 0x400000
WS_PART = 0x1400000
WS_X1 = 0x2800000
WS_H2 = 0x2C00000
WS_HH = 0x3000000
WS_PROF = 0x8000000
SZ_X = 2048 * 576 * 2
SZ_PART1 = 2048 * 576 * 4

KA = dict(x=0, k=8, v=16, wq=24, wo=32, wg=48, wu=56, wd=64, c=72, wmod=80, out=88, dbg=96, ws=104)

OPT = dict(
    qscale_in_h=False,
    prof=False,
    dup=False,
    nomfma=False,
    nords=False,
    stmod=" sc1",
    gpro=2,
    gdist=3,
    apro=2,
    gwin=1.0,
    awin=1.0,
    rowst="",
    merge=True,
    pfat=2,
    halfrd=False,
    pf=True,
)


def f2u(f):
    return struct.unpack("<I", struct.pack("<f", f))[0]


def vr(a, n=1):
    return f"v{a}" if n == 1 else f"v[{a}:{a + n - 1}]"


def sr(a, n=1):
    return f"s{a}" if n == 1 else f"s[{a}:{a + n - 1}]"


class Kern:
    def __init__(self, name):
        self.name = name
        self.L = []
        self.tail = []
        self.vm_iss = 0
        self.vm_done = 0
        self.lg_iss = 0
        self.lg_done = 0

    def __call__(self, s):
        self.L.append("    " + s)

    def label(self, l):
        self.L.append(l + ":")

    def vmem(self, s):
        self(s)
        self.vm_iss += 1
        return self.vm_iss

    def lds(self, s):
        self(s)
        self.lg_iss += 1
        return self.lg_iss

    def wait(self, vm=None, lg=None):
        parts = []
        if vm is not None and vm > self.vm_done:
            n = self.vm_iss - vm
            assert 0 <= n
            if n <= 63:
                parts.append(f"vmcnt({n})")
                self.vm_done = vm
            else:
                raise AssertionError("vmcnt overflow")
        if lg is not None and lg > self.lg_done:
            n = self.lg_iss - lg
            assert 0 <= n
            if n > 15:
                n = 15
            parts.append(f"lgkmcnt({n})")
            self.lg_done = self.lg_iss - n
        if parts:
            self("s_waitcnt " + " ".join(parts))

    def wait_all(self):
        self("s_waitcnt vmcnt(0) lgkmcnt(0)")
        self.vm_done = self.vm_iss
        self.lg_done = self.lg_iss

    def load_ptr(self, sdst, key):
        self(f"s_load_dwordx2 {sr(sdst, 2)}, s[0:1], {KA[key]}")

    def srd(self, sd, sptr, size, off=0):
        if off:
            self(f"s_add_u32 s{sd}, s{sptr}, 0x{off:x}")
            self(f"s_addc_u32 s{sd + 1}, s{sptr + 1}, 0")
        elif sd != sptr:
            self(f"s_mov_b32 s{sd}, s{sptr}")
            self(f"s_mov_b32 s{sd + 1}, s{sptr + 1}")
        self(f"s_mov_b32 s{sd + 2}, 0x{size:x}")
        self(f"s_mov_b32 s{sd + 3}, 0x00020000")

    def tick(self, i):
        if OPT["prof"]:
            self(f"s_memrealtime s[{64 + 2 * i}:{65 + 2 * i}]")
            self(f"s_memtime s[{46 + 2 * i}:{47 + 2 * i}]")
            self.nticks = max(getattr(self, "nticks", 0), i + 1)

    def prof_store(self, kidx):
        if not OPT["prof"]:
            return
        self("s_waitcnt vmcnt(0) lgkmcnt(0)")
        self.tick(7)
        self("s_load_dwordx2 s[84:85], s[0:1], 104")
        self("s_waitcnt lgkmcnt(0)")
        self.srd(88, 84, 256 * 8 * 128, WS_PROF + kidx * 256 * 8 * 128)
        self("s_lshl_b32 s86, s2, 3")
        self("s_add_u32 s86, s86, s63")
        self("s_lshl_b32 s86, s86, 7")
        self("v_mov_b32 v0, 0")
        self("s_mov_b64 exec, 1")
        for i in range(16):
            b = 64 + 2 * i if i < 8 else 46 + 2 * (i - 8)
            self(f"v_mov_b32 v2, s{b}")
            self(f"v_mov_b32 v3, s{b + 1}")
            self(f"buffer_store_dwordx2 v[2:3], v0, s[88:91], s86 offen offset:{8 * i}")
            self("s_nop 1")
        self("s_waitcnt vmcnt(0)")

    def text(self):
        out = [f".globl {self.name}", ".p2align 8", f".type {self.name},@function", f"{self.name}:"]
        out += self.L
        out += self.tail
        return "\n".join(out) + "\n"

    def desc(self, vgpr, sgpr=96):
        acc = (vgpr + 3) // 4 * 4
        return (f".p2align 6\n.amdhsa_kernel {self.name}\n"
                f"  .amdhsa_next_free_vgpr {vgpr}\n  .amdhsa_next_free_sgpr {sgpr}\n"
                f"  .amdhsa_accum_offset {acc}\n  .amdhsa_group_segment_fixed_size 0\n"
                f"  .amdhsa_kernarg_size 112\n  .amdhsa_user_sgpr_count 2\n"
                f"  .amdhsa_user_sgpr_kernarg_segment_ptr 1\n  .amdhsa_system_sgpr_workgroup_id_x 1\n"
                f".end_amdhsa_kernel\n")


def guard(k, gx):
    k(f"s_cmp_ge_u32 s2, {gx}")
    k(f"s_cbranch_scc1 {k.name}_end")
    if OPT["prof"]:
        for i in range(8):
            k(f"s_mov_b64 s[{64 + 2 * i}:{65 + 2 * i}], 0")
            k(f"s_mov_b64 s[{46 + 2 * i}:{47 + 2 * i}], 0")
        k.tick(0)
        k("v_lshrrev_b32 v1, 6, v0")
        k("s_nop 1")
        k("v_readfirstlane_b32 s63, v1")
        k("s_waitcnt lgkmcnt(0)")


KIDX = {}


def finish(k):
    k.prof_store(KIDX.setdefault(k.name, len(KIDX)))
    k.label(f"{k.name}_end")
    k("s_endpgm")


def gen_mod():
    k = Kern("mod_kernel")
    guard(k, 54)
    k.load_ptr(4, "wmod")
    k.load_ptr(8, "c")
    k.load_ptr(16, "ws")
    k("v_and_b32 v1, 7, v0")
    k("v_lshrrev_b32 v2, 3, v0")
    k("s_lshl_b32 s3, s2, 7")
    k("s_movk_i32 s20, 6912")
    k("v_mul_lo_u32 v3, v2, s20")
    k("v_lshl_add_u32 v3, v1, 4, v3")
    k("v_add_u32 v3, s3, v3")
    k("v_lshlrev_b32 v4, 1, v2")
    k("s_waitcnt lgkmcnt(0)")
    k.srd(4, 4, 576 * 3456 * 2)
    k.srd(8, 8, 576 * 2)
    k.srd(12, 16, 3456 * 4, WS_MOD)
    W = 32
    C = 8
    cs = []
    ws = []
    for i in range(18):
        cs.append(k.vmem(f"buffer_load_ushort v{C + i}, v4, s[8:11], 0 offen offset:{i * 64}"))
    for i in range(18):
        k(f"s_mov_b32 s21, {i * 32 * 6912}")
        ws.append(k.vmem(f"buffer_load_dwordx4 {vr(W + 4 * i, 4)}, v3, s[4:7], s21 offen"))
    k.wait(vm=cs[-1])
    T = 104
    k(f"s_mov_b32 s22, 0x{f2u(-1.4426950408889634):x}")
    for i in range(18):
        k(f"v_lshlrev_b32 v{C + i}, 16, v{C + i}")
    for i in range(18):
        k(f"v_mul_f32 v{T + i}, s22, v{C + i}")
    for i in range(18):
        k(f"v_exp_f32 v{T + i}, v{T + i}")
    for i in range(18):
        k(f"v_add_f32 v{T + i}, 1.0, v{T + i}")
    for i in range(18):
        k(f"v_rcp_f32 v{T + i}, v{T + i}")
    for i in range(18):
        k(f"v_mul_f32 v{C + i}, v{C + i}, v{T + i}")
    for i in range(18):
        k(f"v_cvt_pk_bf16_f32 v{C + i}, v{C + i}, v{C + i}")
    for i in range(18):
        k(f"v_and_b32 v{C + i}, 0xffff0000, v{C + i}")
    A = 104
    U = 112
    for i in range(18):
        k.wait(vm=ws[i])
        for q in range(4):
            k(f"v_lshlrev_b32 v{U + 2 * q}, 16, v{W + 4 * i + q}")
            k(f"v_and_b32 v{U + 2 * q + 1}, 0xffff0000, v{W + 4 * i + q}")
        for e in range(8):
            if i == 0:
                k(f"v_mul_f32 v{A + e}, v{C + i}, v{U + e}")
            else:
                k(f"v_fmac_f32 v{A + e}, v{C + i}, v{U + e}")
    k("v_lshlrev_b32 v5, 5, v0")
    k.lds(f"ds_write_b128 v5, {vr(A, 4)}")
    k.lds(f"ds_write_b128 v5, {vr(A + 4, 4)} offset:16")
    k("s_waitcnt lgkmcnt(0)")
    k("s_barrier")
    k("v_cmp_gt_u32 vcc, 64, v0")
    k("s_and_saveexec_b64 s[24:25], vcc")
    k(f"s_cbranch_execz {k.name}_end")
    k("v_lshlrev_b32 v5, 2, v0")
    for r in range(32):
        k(f"ds_read_b32 v{W + r}, v5 offset:{r * 256}")
    k("s_waitcnt lgkmcnt(0)")
    n = 32
    while n > 1:
        n //= 2
        for r in range(n):
            k(f"v_add_f32 v{W + r}, v{W + r}, v{W + r + n}")
    k(f"v_cvt_pk_bf16_f32 v{W}, v{W}, v{W}")
    k(f"v_and_b32 v{W}, 0xffff0000, v{W}")
    k("s_mov_b32 s26, 0")
    k("s_sub_u32 s27, s2, 9")
    k("s_cmp_lt_u32 s27, 9")
    k("s_cselect_b32 s26, 1.0, s26")
    k("s_sub_u32 s27, s2, 36")
    k("s_cmp_lt_u32 s27, 9")
    k("s_cselect_b32 s26, 1.0, s26")
    k(f"v_add_f32 v{W}, s26, v{W}")
    k(f"v_cvt_pk_bf16_f32 v{W}, v{W}, v{W}")
    k(f"v_and_b32 v{W}, 0xffff0000, v{W}")
    k("s_lshl_b32 s3, s2, 8")
    k(f"buffer_store_dword v{W}, v5, s[12:15], s3 offen")
    finish(k)
    return k, 128, (54, 256, 8192)


def dpp_sum16(k, v, t):
    for mod in ("quad_perm:[1,0,3,2]", "quad_perm:[2,3,0,1]", "row_half_mirror", "row_mirror"):
        k("s_nop 1")
        k(f"v_add_f32_dpp v{v}, v{v}, v{v} {mod} row_mask:0xf bank_mask:0xf")


def wave_sum8(k, v, t):
    k("s_nop 1")
    k(f"v_add_f32_dpp v{v}, v{v}, v{v} row_ror:8 row_mask:0xf bank_mask:0xf")
    for sw in ("v_permlane16_swap_b32", "v_permlane32_swap_b32"):
        k(f"v_mov_b32 v{t}, v{v}")
        k("s_nop 1")
        k(f"{sw} v{v}, v{t}")
        k("s_nop 1")
        k(f"v_add_f32 v{v}, v{v}, v{t}")


NSPLIT = 4


def gen_row(mode):
    k = Kern(f"{mode}_kernel")
    guard(k, 256)
    k.load_ptr(4, "x")
    k.load_ptr(6, "ws")
    k.load_ptr(28, "out")
    if mode == "ln1":
        k.load_ptr(36, "dbg")
        k.load_ptr(40, "wmod")
        k.load_ptr(44, "c")
        k.load_ptr(80, "wq")
        k.load_ptr(84, "k")
        k.load_ptr(86, "v")
        k("v_lshrrev_b32 v1, 6, v0")
        k("s_nop 0")
        k("v_readfirstlane_b32 s89, v1")
    perm = mode != "ln1"
    M, CH, AL, RM, PA, LW = 1, 2, 3, 4, 5, 6
    k(f"v_and_b32 v{M}, 7, v0")
    k(f"v_lshrrev_b32 v{CH}, 3, v0")
    k(f"v_lshlrev_b32 v{AL}, 4, v{M}")
    k(f"v_lshl_add_u32 v{AL}, v{CH}, 9, v{AL}")
    if perm:
        k(f"v_lshrrev_b32 v7, 2, v{CH}")
        k(f"v_and_b32 v{PA}, 3, v{CH}")
        k(f"v_lshlrev_b32 v{PA}, 4, v{PA}")
        k(f"v_lshl_add_u32 v{PA}, v7, 7, v{PA}")
    else:
        k(f"v_lshlrev_b32 v{PA}, 5, v{CH}")
    hi4 = 64 if perm else 16
    k(f"v_mul_u32_u24 v{RM}, 1152, v{M}")
    k(f"v_lshrrev_b32 v7, 1, v{PA}")
    k(f"v_add_u32 v{RM}, v{RM}, v7")
    k("s_lshr_b32 s30, s2, 2")
    k("s_mul_i32 s30, s30, 36864")
    k("s_and_b32 s31, s2, 3")
    k("s_lshl_b32 s31, s31, 7")
    k("s_add_u32 s30, s30, s31")
    k("s_mul_i32 s31, s2, 9216")
    k("s_waitcnt lgkmcnt(0)")
    k.srd(8, 4, SZ_X)
    k.srd(12, 6, 3456 * 4, WS_MOD)
    k.srd(16, 6, NSPLIT * SZ_X, WS_PART)
    k.srd(24, 6, SZ_X, WS_X1)
    if mode == "fin":
        k.srd(20, 28, SZ_X)
    else:
        k.srd(20, 6, SZ_X, WS_H if mode == "ln1" else WS_H2)
    X = 8
    P = 12
    G = P + 4 * NSPLIT
    SH = G + 8
    SC = SH + 8
    V = SC + 8
    U = V + 8
    NV = U + 20

    merge = mode == "ln1" and OPT["merge"]

    def ldparam(dst, chunk):
        sc = " sc1" if merge else ""
        k(f"s_movk_i32 s33, {chunk * 2304}")
        k.vmem(f"buffer_load_dwordx4 {vr(dst, 4)}, v{PA}, s[12:15], s33 offen{sc}")
        return k.vmem(f"buffer_load_dwordx4 {vr(dst + 4, 4)}, v{PA}, s[12:15], s33 offen offset:{hi4}{sc}")

    def unpack(dst, src):
        for i in range(4):
            k(f"v_lshlrev_b32 v{dst + 2 * i}, 16, v{src + i}")
            k(f"v_and_b32 v{dst + 2 * i + 1}, 0xffff0000, v{src + i}")

    if merge:
        k.srd(36, 36, 256)
        k("s_cmp_lt_u32 s2, 54")
        k("s_cbranch_scc1 ln1_mod")
        k.label("ln1_main")
        mod_part(k, P)
        xw = k.vmem(f"buffer_load_dwordx4 {vr(X, 4)}, v{RM}, s[8:11], s31 offen")
        pfi = row_prefetch(k, mode, U + 16)
        k.wait(vm=xw)
        pfi()
        unpack(V, X)
    elif mode == "ln1":
        xw = k.vmem(f"buffer_load_dwordx4 {vr(X, 4)}, v{RM}, s[8:11], s31 offen")
        ldparam(SH, 0)
        cw = ldparam(SC, 1)
        row_prefetch(k, mode, U + 16)()
        k.wait(vm=xw)
        unpack(V, X)
    else:
        pw = []
        for s in range(NSPLIT):
            k(f"s_add_u32 s32, s30, {s * SZ_X}")
            pw.append(k.vmem(f"buffer_load_dwordx4 {vr(P + 4 * s, 4)}, v{AL}, s[16:19], s32 offen"))
        if mode == "ln2":
            k.vmem(f"buffer_load_dwordx2 {vr(X, 2)}, v{RM}, s[8:11], s31 offen")
            k.vmem(f"buffer_load_dwordx2 {vr(X + 2, 2)}, v{RM}, s[8:11], s31 offen offset:32")
        else:
            k.vmem(f"buffer_load_dwordx4 {vr(X, 4)}, v{AL}, s[24:27], s30 offen")
        gw = ldparam(G, 2 if mode == "ln2" else 5)
        if mode == "ln2":
            ldparam(SH, 3)
            cw = ldparam(SC, 4)
        k.wait(vm=pw[0])
        unpack(V, P)
        for s in range(1, NSPLIT):
            k.wait(vm=pw[s])
            unpack(U, P + 4 * s)
            for e in range(8):
                k(f"v_add_f32 v{V + e}, v{V + e}, v{U + e}")
        k.wait(vm=gw)
        unpack(U, X)
        for e in range(8):
            k(f"v_fma_f32 v{V + e}, v{V + e}, v{G + e}, v{U + e}")
        for i in range(4):
            k(f"v_cvt_pk_bf16_f32 v{X + i}, v{V + 2 * i}, v{V + 2 * i + 1}")
        if mode == "fin":
            k.vmem(f"buffer_store_dwordx2 {vr(X, 2)}, v{RM}, s[20:23], s31 offen")
            k.vmem(f"buffer_store_dwordx2 {vr(X + 2, 2)}, v{RM}, s[20:23], s31 offen offset:32")
            finish(k)
            return k, NV, (256, 576, 0)
        k.vmem(f"buffer_store_dwordx4 {vr(X, 4)}, v{AL}, s[24:27], s30 offen{OPT['rowst']}")
        unpack(V, X)
    A, B, T = G, G + 1, G + 2
    k(f"v_add_f32 v{A}, v{V}, v{V + 1}")
    k(f"v_add_f32 v{T}, v{V + 2}, v{V + 3}")
    k(f"v_add_f32 v{T + 1}, v{V + 4}, v{V + 5}")
    k(f"v_add_f32 v{T + 2}, v{V + 6}, v{V + 7}")
    k(f"v_add_f32 v{A}, v{A}, v{T}")
    k(f"v_add_f32 v{T + 1}, v{T + 1}, v{T + 2}")
    k(f"v_add_f32 v{A}, v{A}, v{T + 1}")
    wave_sum8(k, A, T)
    k(f"v_mul_f32 v{A}, 0x{f2u(1.0 / 64):x}, v{A}")
    for e in range(8):
        k(f"v_sub_f32 v{U + e}, v{V + e}, v{A}")
    k(f"v_mul_f32 v{B}, v{U}, v{U}")
    k(f"v_mul_f32 v{T}, v{U + 1}, v{U + 1}")
    for e in range(2, 8):
        k(f"v_fmac_f32 v{(B, T)[e & 1]}, v{U + e}, v{U + e}")
    k(f"v_add_f32 v{B}, v{B}, v{T}")
    wave_sum8(k, B, T)
    k(f"v_mul_u32_u24 v{LW}, 80, v{M}")
    k("v_lshrrev_b32 v7, 6, v0")
    k(f"v_lshl_add_u32 v7, v7, 3, v{LW}")
    k(f"ds_write_b64 v7, {vr(A, 2)}")
    if merge:
        k("s_cmp_lg_u32 s89, 0")
        k("s_cbranch_scc1 ln1_go")
        k(f"v_mov_b32 v{U}, 0")
        k.label("ln1_poll")
        k(f"buffer_load_dword v{U + 1}, v{U}, s[36:39], 0 offen sc1")
        k("s_waitcnt vmcnt(0)")
        k(f"v_readfirstlane_b32 s40, v{U + 1}")
        k("s_cmp_lt_u32 s40, 18")
        k("s_cbranch_scc1 ln1_poll")
        k.label("ln1_go")
    k("s_waitcnt lgkmcnt(0)")
    k("s_barrier")
    if merge:
        ldparam(SH, 0)
        cw = ldparam(SC, 1)
    for i in range(4):
        k(f"ds_read_b128 {vr(U + 4 * i, 4)}, v{LW} offset:{16 * i}")
    k(f"ds_read_b64 {vr(A, 2)}, v{LW} offset:64")
    k("s_waitcnt lgkmcnt(0)")
    mu = [U + 2 * i for i in range(8)] + [A]
    m2 = [U + 2 * i + 1 for i in range(8)] + [B]
    MEAN, VAR = T, T + 1
    k(f"v_add_f32 v{MEAN}, v{mu[0]}, v{mu[1]}")
    k(f"v_add_f32 v{VAR}, v{m2[0]}, v{m2[1]}")
    for i in range(2, 9):
        k(f"v_add_f32 v{MEAN}, v{MEAN}, v{mu[i]}")
        k(f"v_add_f32 v{VAR}, v{VAR}, v{m2[i]}")
    k(f"v_mul_f32 v{MEAN}, 0x{f2u(1.0 / 9):x}, v{MEAN}")
    k(f"v_mul_f32 v{VAR}, 0x{f2u(1.0 / 64):x}, v{VAR}")
    for i in range(9):
        k(f"v_sub_f32 v{mu[i]}, v{mu[i]}, v{MEAN}")
    for i in range(9):
        k(f"v_fmac_f32 v{VAR}, v{mu[i]}, v{mu[i]}")
    k(f"v_mov_b32 v{T + 2}, 0x{f2u(1e-5):x}")
    k(f"v_fmac_f32 v{T + 2}, 0x{f2u(1.0 / 9):x}, v{VAR}")
    k(f"v_rsq_f32 v{T + 2}, v{T + 2}")
    for e in range(8):
        k(f"v_sub_f32 v{V + e}, v{V + e}, v{MEAN}")
    for e in range(8):
        k(f"v_mul_f32 v{V + e}, v{V + e}, v{T + 2}")
    k.wait(vm=cw)
    for e in range(8):
        k(f"v_fma_f32 v{V + e}, v{V + e}, v{SC + e}, v{SH + e}")
    if mode == "ln1" and OPT["qscale_in_h"]:
        for e in range(8):
            k(f"v_mul_f32 v{V + e}, 0x{f2u(QSCALE):x}, v{V + e}")
    for i in range(4):
        k(f"v_cvt_pk_bf16_f32 v{P + i}, v{V + 2 * i}, v{V + 2 * i + 1}")
    k.vmem(f"buffer_store_dwordx4 {vr(P, 4)}, v{AL}, s[20:23], s30 offen{OPT['rowst']}")
    k("s_waitcnt vmcnt(0)")
    finish(k)
    return k, NV, (256, 576, 4096)


def row_prefetch(k, mode, T):
    if not OPT["pf"]:
        return lambda: None
    k("s_lshr_b32 s88, s2, 3")
    k("s_bfe_u32 s90, s2, 0x20001")
    k("s_mul_i32 s91, s88, 288")
    k(f"v_subrev_u32 v{T}, 64, v0")
    k(f"v_min_u32 v{T}, 287, v{T}")
    k(f"v_add_u32 v{T}, s91, v{T}")
    k(f"v_lshrrev_b32 v{T + 1}, 4, v{T}")
    k(f"v_and_b32 v{T}, 15, v{T}")
    k(f"v_lshlrev_b32 v{T}, 7, v{T}")
    k(f"v_lshl_add_u32 v{T}, v{T + 1}, 13, v{T}")
    k("s_lshl_b32 s91, s90, 11")
    k(f"v_and_b32 v{T + 1}, 127, v0")
    k(f"v_lshlrev_b32 v{T + 1}, 7, v{T + 1}")
    k("s_lshr_b32 s92, s88, 3")
    k("s_lshl_b32 s93, s90, 2")
    k("s_add_u32 s92, s92, s93")
    k("s_lshl_b32 s92, s92, 19")
    k("s_and_b32 s93, s88, 7")
    k("s_cmp_ge_u32 s89, 8")
    k("s_cselect_b32 s94, 13, 14")
    k("s_cselect_b32 s84, s86, s84")
    k("s_cselect_b32 s85, s87, s85")
    k("s_lshl_b32 s93, s93, s94")
    k("s_add_u32 s92, s92, s93")
    k(f"s_add_u32 s92, s92, {1536 * 256}")
    k("s_cmp_ge_u32 s89, 6")
    k("s_cselect_b64 vcc, -1, 0")
    k("s_cselect_b32 s91, s92, s91")
    k(f"v_cndmask_b32 v{T}, v{T}, v{T + 1}, vcc")
    k(f"s_mov_b32 s82, {576 * 4096 * 2}")
    k(f"s_cselect_b32 s82, {16 * 2048 * 256}, s82")
    k("s_cselect_b32 s80, s84, s80")
    k("s_cselect_b32 s81, s85, s81")
    k("s_mov_b32 s83, 0x00020000")

    def issue():
        k("s_cmp_eq_u32 s89, 0")
        k("s_cbranch_scc1 ln1_nopf")
        k(f"buffer_load_dword v{T + 3}, v{T}, s[80:83], s91 offen")
        k.label("ln1_nopf")
    return issue


def mod_part(main, R):
    k = Kern("tmp")
    k.label("ln1_mod")
    C, W, A, U = R, R + 8, R + 40, R + 48
    k.srd(40, 40, 576 * 3456 * 2)
    k.srd(44, 44, 576 * 2)
    k(f"v_mul_u32_u24 v{U}, 6912, v2")
    k(f"v_lshl_add_u32 v{U}, v1, 4, v{U}")
    k(f"v_lshlrev_b32 v{U + 1}, 1, v2")
    k("s_lshl_b32 s3, s2, 7")
    cs, ws = [], []
    for i in range(8):
        cs.append(k.vmem(f"buffer_load_ushort v{C + i}, v{U + 1}, s[44:47], 0 offen offset:{i * 144}"))
    for i in range(8):
        k(f"s_add_u32 s33, s3, {i * 72 * 6912}")
        ws.append(k.vmem(f"buffer_load_dwordx4 {vr(W + 4 * i, 4)}, v{U}, s[40:43], s33 offen"))
    k.wait(vm=cs[-1])
    T = A
    for ins in (f"v_lshlrev_b32 v{{c}}, 16, v{{c}}", f"v_mul_f32 v{{t}}, 0x{f2u(-1.4426950408889634):x}, v{{c}}",
                "v_exp_f32 v{t}, v{t}", "v_add_f32 v{t}, 1.0, v{t}", "v_rcp_f32 v{t}, v{t}",
                "v_mul_f32 v{c}, v{c}, v{t}", "v_cvt_pk_bf16_f32 v{c}, v{c}, v{c}", "v_and_b32 v{c}, 0xffff0000, v{c}"):
        for i in range(8):
            k(ins.format(c=C + i, t=T + i))
    for i in range(8):
        k.wait(vm=ws[i])
        for q in range(4):
            k(f"v_lshlrev_b32 v{U + 2 * q}, 16, v{W + 4 * i + q}")
            k(f"v_and_b32 v{U + 2 * q + 1}, 0xffff0000, v{W + 4 * i + q}")
        for e in range(8):
            k(f"v_mul_f32 v{A + e}, v{C + i}, v{U + e}" if i == 0 else f"v_fmac_f32 v{A + e}, v{C + i}, v{U + e}")
    for e in range(8):
        k(f"v_add_f32_dpp v{A + e}, v{A + e}, v{A + e} row_ror:8 row_mask:0xf bank_mask:0xf")
    for sw in ("v_permlane16_swap_b32", "v_permlane32_swap_b32"):
        for e in range(8):
            k(f"v_mov_b32 v{U + e}, v{A + e}")
        for e in range(8):
            k(f"{sw} v{A + e}, v{U + e}")
        for e in range(8):
            k(f"v_add_f32 v{A + e}, v{A + e}, v{U + e}")
    k("s_lshl_b32 s33, s89, 8")
    k(f"v_lshlrev_b32 v{U}, 5, v1")
    k(f"v_add_u32 v{U}, s33, v{U}")
    k(f"ds_write_b128 v{U}, {vr(A, 4)} offset:1024")
    k(f"ds_write_b128 v{U}, {vr(A + 4, 4)} offset:1040")
    k("s_waitcnt lgkmcnt(0)")
    k("s_barrier")
    k("s_cmp_lg_u32 s89, 0")
    k("s_cbranch_scc1 ln1_main")
    k(f"v_lshlrev_b32 v{U}, 2, v0")
    for r in range(9):
        k(f"ds_read_b32 v{W + r}, v{U} offset:{1024 + r * 256}")
    k("s_mov_b32 s33, 0")
    k("s_sub_u32 s3, s2, 9")
    k("s_cmp_lt_u32 s3, 9")
    k("s_cselect_b32 s33, 1.0, s33")
    k("s_sub_u32 s3, s2, 36")
    k("s_cmp_lt_u32 s3, 9")
    k("s_cselect_b32 s33, 1.0, s33")
    k("s_lshl_b32 s3, s2, 8")
    k("s_waitcnt lgkmcnt(0)")
    for a, b in ((0, 1), (2, 3), (4, 5), (6, 7), (0, 2), (4, 6), (0, 8), (0, 4)):
        k(f"v_add_f32 v{W + a}, v{W + a}, v{W + b}")
    k(f"v_cvt_pk_bf16_f32 v{W}, v{W}, v{W}")
    k(f"v_and_b32 v{W}, 0xffff0000, v{W}")
    k(f"v_add_f32 v{W}, s33, v{W}")
    k(f"v_cvt_pk_bf16_f32 v{W}, v{W}, v{W}")
    k(f"v_and_b32 v{W}, 0xffff0000, v{W}")
    k(f"buffer_store_dword v{W}, v{U}, s[12:15], s3 offen sc1")
    k("s_cmp_ge_u32 s2, 18")
    k("s_cbranch_scc1 ln1_main")
    k(f"v_mov_b32 v{U + 1}, 1")
    k("s_waitcnt vmcnt(0)")
    k("s_mov_b64 exec, 1")
    k(f"buffer_atomic_add v{U + 1}, v{U}, s[36:39], 0 offen sc1")
    k("s_mov_b64 exec, -1")
    k("s_branch ln1_main")
    main.tail += k.L


QSCALE = (128 ** -0.5) * 1.4426950408889634


class Step:
    def __init__(self, group, reads, mfma, pre_read=None, pre=None):
        self.group = group
        self.reads = reads
        self.mfma = mfma
        self.pre = pre or []
        self.valu = []
        self.slots = []


def run_stream(k, steps, FR, NFR, LOOK, group_cover, on_sync, dma_per_step=1, queue0=None, lgbar=False, win=0.0):
    synced = set()
    queue = list(queue0 or [])
    rseq = {}
    N = len(steps)
    k.slot_last_read = {}
    for n in range(-LOOK, N):
        m = n + LOOK
        if m < N:
            st = steps[m]
            if st.group not in synced:
                while queue and group_cover.get(st.group) is None:
                    queue.pop(0)()
                assert group_cover.get(st.group) is not None, st.group
                k.wait(vm=group_cover[st.group], lg=k.lg_iss if lgbar else None)
                k("s_barrier")
                if st.group in getattr(k, "tick_groups", {}):
                    k.tick(k.tick_groups[st.group])
                synced.add(st.group)
                queue += on_sync(st.group, n)
                nx = m
                while nx < N and steps[nx].group == st.group:
                    nx += 1
                span = max(1.0, (nx - m) * win)
                rate = max(len(queue) / span, 1e-9)
                credit = 1.0
            dst = FR + 4 * (m % NFR)
            last = None
            for ins in st.reads(dst):
                if ins.startswith("ds_") and (OPT["nords"] or (OPT["halfrd"] and k.name == "glu_kernel" and m % 2)):
                    last = k.lg_iss
                elif ins.startswith("ds_"):
                    last = k.lds(ins)
                else:
                    k(ins)
            rseq[m] = last
            for s in st.slots:
                k.slot_last_read[s] = last
        if n >= 0:
            st = steps[n]
            k.wait(lg=rseq[n])
            for p in st.pre:
                if callable(p):
                    p()
                else:
                    k(p)
            for ins in st.mfma(FR + 4 * (n % NFR)):
                if not OPT["nomfma"]:
                    k(ins)
            k.cur_step = n
            if win:
                while queue and credit >= 1.0 - 1e-9:
                    queue.pop(0)()
                    credit -= 1.0
                credit += rate
            else:
                for _ in range(dma_per_step):
                    if queue:
                        queue.pop(0)()
            for p in st.valu:
                if callable(p):
                    p()
                else:
                    k(p)
    assert not queue


def spread(steps, first, last, items):
    total = sum(c for _, c in items)
    n = last - first + 1
    acc = 0.0
    for ins, c in items:
        idx = first + min(n - 1, int((acc + c * 0.5) * n / total))
        steps[idx].valu.append(ins)
        acc += c


def pf_setup(k, keys, size, per_wg, lpr, rstride, xoff, VP, T, wave="s24"):
    per_wave = (per_wg + 7) // 8
    assert per_wave <= 64
    for j, key in enumerate(keys):
        k.load_ptr(80 + 4 * j, key)
    k(f"v_and_b32 v{VP}, 63, v0")
    k(f"v_min_u32 v{VP}, {per_wave - 1}, v{VP}")
    k("s_lshr_b32 s88, s2, 3")
    k(f"s_mul_i32 s88, s88, {per_wg}")
    k(f"s_mul_i32 s89, {wave}, {per_wave}")
    k("s_add_u32 s88, s88, s89")
    k(f"v_add_u32 v{VP}, s88, v{VP}")
    k(f"v_min_u32 v{VP}, {32 * per_wg - 1}, v{VP}")
    if lpr:
        mul = (65536 + lpr - 1) // lpr
        assert all((i * mul) >> 16 == i // lpr for i in range(32 * per_wg))
        k(f"v_mul_u32_u24 v{T}, {mul}, v{VP}")
        k(f"v_lshrrev_b32 v{T}, 16, v{T}")
        k(f"v_mul_u32_u24 v{T}, {rstride // 128 - lpr}, v{T}")
        k(f"v_add_u32 v{VP}, v{VP}, v{T}")
    k(f"v_lshlrev_b32 v{VP}, 7, v{VP}")
    k("s_bfe_u32 s88, s2, 0x20001")
    k(f"s_mul_i32 s88, s88, {xoff}")
    k(f"v_add_u32 v{VP}, s88, v{VP}")

    def after_wait():
        for j in range(len(keys)):
            k.srd(80 + 4 * j, 80 + 4 * j, size)

    def ops():
        return [lambda j=j: k.vmem(f"buffer_load_dword v{VP + 1 + j}, v{VP}, s[{80 + 4 * j}:{83 + 4 * j}], 0 offen")
                for j in range(len(keys))]
    return after_wait, ops


def gen_attn():
    k = Kern("attn_kernel")
    O, NEGM, SA, SB, QF, FR = 0, 64, 80, 112, 144, 176
    KAD, VAD, WAD = 208, 216, 220
    L0, L1, MX0, MX1, ALPHA, TMP = 224, 225, 226, 227, 228, 229
    DK0, DK1, DV, DW0, DW1, LIN = 230, 231, 232, 233, 234, 235
    NV = 236
    SLOT = 16384
    NSLOT = 10
    guard(k, 256)
    k.load_ptr(4, "wq")
    k.load_ptr(8, "k")
    k.load_ptr(12, "v")
    k.load_ptr(32, "ws")
    T = FR
    k(f"v_lshrrev_b32 v{T}, 6, v0")
    k(f"v_and_b32 v{T + 1}, 63, v0")
    k(f"v_readfirstlane_b32 s24, v{T}")
    ln = T + 1
    k("s_and_b32 s34, s2, 6")
    k("s_lshl_b32 s34, s34, 2")
    k("s_bfe_u32 s35, s2, 0x30003")
    k("s_add_u32 s34, s34, s35")
    k("s_and_b32 s35, s2, 1")
    k("s_lshl_b32 s35, s35, 2")
    k("s_lshr_b32 s36, s2, 6")
    k("s_add_u32 s35, s35, s36")
    k("s_lshl_b32 s35, s35, 3")
    k("s_add_u32 s35, s35, s24")
    k("s_lshl_b32 s25, s24, 11")
    k("s_mul_i32 s26, s35, 36864")
    k("s_lshr_b32 s27, s34, 1")
    k("s_lshl_b32 s27, s27, 19")
    k(f"s_add_u32 s27, s27, {1536 * 256}")
    k("s_lshl_b32 s28, s35, 18")
    k("s_lshl_b32 s36, s34, 13")
    k("s_add_u32 s28, s28, s36")
    k("s_mov_b32 s29, 0")
    G4, P16, R8 = T + 2, T + 3, T + 4
    k(f"v_lshrrev_b32 v{G4}, 4, v{ln}")
    k(f"v_and_b32 v{P16}, 15, v{ln}")
    k(f"v_lshlrev_b32 v{LIN}, 4, v{ln}")
    k("s_lshl_b32 s36, s24, 3")
    k(f"v_add_u32 v{R8}, s36, v{G4}")
    a, b = T + 5, T + 6
    k(f"v_lshlrev_b32 v{a}, 2, v{G4}")
    k(f"v_xor_b32 v{a}, v{a}, v{P16}")
    k(f"v_lshlrev_b32 v{a}, 4, v{a}")
    k(f"v_lshl_add_u32 v{DV}, v{R8}, 8, v{a}")
    k(f"v_lshl_add_u32 v{DW0}, v{R8}, 13, v{a}")
    k("s_lshl_b32 s36, s34, 8")
    k(f"v_add_u32 v{DW0}, s36, v{DW0}")
    k(f"v_add_u32 v{DW1}, {32768 - 1024}, v{DW0}")
    k(f"v_and_b32 v{a}, 15, v{R8}")
    k(f"v_xor_b32 v{a}, v{a}, v{P16}")
    k(f"v_lshlrev_b32 v{a}, 4, v{a}")
    k(f"v_lshl_add_u32 v{DK0}, v{R8}, 8, v{a}")
    k(f"v_xor_b32 v{DK1}, 64, v{DK0}")
    HF = T + 7
    k(f"v_lshrrev_b32 v{HF}, 5, v{ln}")
    k(f"v_xor_b32 v{a}, v{HF}, v{P16}")
    k(f"v_lshlrev_b32 v{a}, 4, v{a}")
    k(f"v_and_b32 v{b}, 31, v{ln}")
    k(f"v_lshl_add_u32 v{KAD}, v{b}, 8, v{a}")
    for s in range(1, 8):
        k(f"v_xor_b32 v{KAD + s}, {s << 5}, v{KAD}")
    R, C, DS = T + 8, T + 9, T + 10
    k(f"v_bfe_u32 v{R}, v{ln}, 2, 2")
    k(f"v_and_b32 v{C}, 3, v{ln}")
    k(f"v_bfe_u32 v{DS}, v{ln}, 4, 1")
    k(f"v_mul_u32_u24 v{a}, {256 + 64}, v{R}")
    k(f"v_lshl_add_u32 v{a}, v{DS}, 5, v{a}")
    k(f"v_lshl_add_u32 v{VAD}, v{HF}, 10, v{a}")
    k(f"v_lshl_add_u32 v{VAD}, v{C}, 3, v{VAD}")
    k(f"v_lshl_add_u32 v{WAD}, v{HF}, 11, v{a}")
    k(f"v_and_b32 v{b}, 1, v{C}")
    k(f"v_lshl_add_u32 v{WAD}, v{b}, 4, v{WAD}")
    k(f"v_lshrrev_b32 v{b}, 1, v{C}")
    k(f"v_lshl_add_u32 v{WAD}, v{b}, 3, v{WAD}")
    for t in range(1, 4):
        k(f"v_xor_b32 v{VAD + t}, {t << 6}, v{VAD}")
        k(f"v_xor_b32 v{WAD + t}, {t << 6}, v{WAD}")
    k(f"v_mov_b32 v{L0}, 0")
    k(f"v_mov_b32 v{L1}, 0")
    pfw, pfops = pf_setup(k, ["wo"], 4096 * 576 * 2, 288, 0, 0, 1024 * 1152, NV, T)
    NV += 2
    k("s_waitcnt lgkmcnt(0)")
    pfw()
    k.srd(4, 4, 576 * 4096 * 2)
    k.srd(8, 8, 16 * 2048 * 128 * 2)
    k.srd(12, 12, 16 * 2048 * 128 * 2)
    k.srd(16, 32, SZ_X, WS_H)
    k.srd(20, 32, 2048 * 4096 * 2, WS_O)

    slots = [("W", s) for s in range(9)] + [("K", 0), ("K", 1)]
    for i in range(6):
        slots += [("V", i), ("K", i + 2)]
    slots += [("V", 6), ("V", 7)]
    sidx = {s: i for i, s in enumerate(slots)}
    groups = [[i] for i in range(9)] + [[9 + 2 * g, 10 + 2 * g] for g in range(8)]
    gof = {}
    for g, ss in enumerate(groups):
        for s in ss:
            gof[s] = g
    cover = {}
    h_last_use = {}

    def issue_ops(g):
        ops = []
        for idx in groups[g]:
            kind, c = slots[idx]
            pos = idx % NSLOT

            def mk(kind=kind, c=c, pos=pos, u=0, idx=idx):
                def f():
                    k(f"s_add_u32 m0, s25, {pos * SLOT}")
                    if kind == "W":
                        k(f"s_mov_b32 s30, {c * 64 * 8192}")
                        va, srd = (DW0, DW1)[u], "s[4:7]"
                    else:
                        k(f"s_add_u32 s30, s27, {c * 16384}")
                        if kind == "K":
                            va, srd = (DK0, DK1)[u], "s[8:11]"
                        else:
                            va, srd = DV, "s[12:15]"
                    off = " offset:1024" if u else ""
                    return k.vmem(f"buffer_load_dwordx4 v{va}, {srd}, s30 offen{off} lds")
                return f
            ops.append(mk(u=0))
            ops.append(mk(u=1))
            if kind == "W":
                for ks in range(4):
                    def fh(c=c, ks=ks):
                        if c >= 5:
                            assert k.cur_step >= h_last_use[c - 5], (c, k.cur_step)
                        k(f"s_add_u32 s31, s26, {c * 4096}")
                        return k.vmem(f"buffer_load_dwordx4 {vr(16 * (c % 5) + 4 * ks, 4)}, v{LIN}, s[16:19], s31 offen offset:{ks * 1024}")
                    ops.append(fh)
        last = ops[-1]

        def fin():
            cover[g] = last()
        return ops[:-1] + [fin]

    def on_sync(g, n):
        tgt = g + 3
        if g < 2 or tgt >= len(groups):
            return []
        for idx in groups[tgt]:
            old = idx - NSLOT
            if old >= 0:
                assert old in k.slot_last_read and k.slot_last_read[old] <= k.lg_done, (g, idx)
                assert all(old not in st.slots for st in steps[max(0, n + LOOK):]), (g, idx)
        return issue_ops(tgt) + (pfops() if OPT["pf"] and tgt == len(groups) - 1 else [])

    bias = {"K": 0, "V": 0, "W": 0}
    setregs = {"K": (KAD, 8), "V": (VAD, 4), "W": (WAD, 4)}

    def fix_bias(kind, base):
        out = []
        if not (bias[kind] <= base and base + SLOT <= bias[kind] + 65536):
            d = base - bias[kind]
            r0, n = setregs[kind]
            for i in range(n):
                if d > 0:
                    out.append(f"v_add_u32 v{r0 + i}, {d}, v{r0 + i}")
                else:
                    out.append(f"v_subrev_u32 v{r0 + i}, {-d}, v{r0 + i}")
            bias[kind] = base
        return out

    def tr_reads(kind, idx, t, row0, estep):
        def f(dst):
            base = (idx % NSLOT) * SLOT
            out = fix_bias(kind, base)
            r0 = setregs[kind][0]
            for e in range(2):
                off = base - bias[kind] + (row0 + estep * e) * 256
                out.append(f"ds_read_b64_tr_b16 {vr(dst + 2 * e, 2)}, v{r0 + t} offset:{off}")
            return out
        return f

    def k_reads(idx, j, s):
        def f(dst):
            base = (idx % NSLOT) * SLOT
            out = fix_bias("K", base)
            off = base - bias["K"] + j * 8192
            out.append(f"ds_read_b128 {vr(dst, 4)}, v{KAD + s} offset:{off}")
            return out
        return f

    MF = "v_mfma_f32_32x32x16_bf16"
    steps = []
    LOOK = 6
    for s in range(9):
        idx = sidx[("W", s)]
        for ks in range(4):
            for t in range(4):
                d = vr(SA + 16 * t, 16)
                c = "0" if (s == 0 and ks == 0) else d
                hb = vr(16 * (s % 5) + 4 * ks, 4)
                st = Step(gof[idx], tr_reads("W", idx, t, 16 * ks, 4),
                          lambda fr, d=d, c=c, hb=hb: [f"{MF} {d}, {vr(fr, 4)}, {hb}, {c}"])
                st.slots = [idx]
                steps.append(st)
        h_last_use[s] = len(steps) - 1

    def qk_steps(c):
        idx = sidx[("K", c)]
        S = SA if c % 2 == 0 else SB
        first = len(steps)
        for s in range(8):
            for j in range(2):
                d = vr(S + 16 * j, 16)
                cc = d if s else ("0" if c < 2 else vr(NEGM, 16))
                st = Step(gof[idx], k_reads(idx, j, s),
                          lambda fr, d=d, cc=cc, s=s: [f"{MF} {d}, {vr(fr, 4)}, {vr(QF + 4 * s, 4)}, {cc}"])
                st.slots = [idx]
                steps.append(st)
        return first

    def pv_steps(c):
        idx = sidx[("V", c)]
        S = SA if c % 2 == 0 else SB
        first = len(steps)
        for kk in range(4):
            for t in range(4):
                d = vr(O + 16 * t, 16)
                cc = "0" if (c == 0 and kk == 0) else d
                pb = vr(S + 8 * kk, 4)
                st = Step(gof[idx], tr_reads("V", idx, t, 16 * kk, 8),
                          lambda fr, d=d, cc=cc, pb=pb: [f"{MF} {d}, {vr(fr, 4)}, {pb}, {cc}"])
                st.slots = [idx]
                steps.append(st)
        return first

    def max_ops(S):
        it = [(f"v_max3_f32 v{MX0}, v{S}, v{S + 1}, v{S + 2}", 1), (f"v_max3_f32 v{MX1}, v{S + 3}, v{S + 4}, v{S + 5}", 1)]
        for q in range(13):
            m = (MX0, MX1)[q % 2]
            it.append((f"v_max3_f32 v{m}, v{m}, v{S + 6 + 2 * q}, v{S + 7 + 2 * q}", 1))
        it.append((f"v_max_f32 v{MX0}, v{MX0}, v{MX1}", 1))
        return it

    def exp_ops(S):
        it = []
        for g in range(4):
            b = S + 8 * g
            for e in range(8):
                it.append((f"v_exp_f32 v{b + e}, v{b + e}", 2))
            for e in range(8):
                l = (L0, L1)[e % 2]
                it.append((f"v_add_f32 v{l}, v{l}, v{b + e}", 1))
            for e in range(4):
                it.append((f"v_cvt_pk_bf16_f32 v{b + e}, v{b + 2 * e}, v{b + 2 * e + 1}", 1))
        return it

    def xhalf_max():
        return [(f"v_mov_b32 v{MX1}, v{MX0}", 1), ("s_nop 1", 1), (f"v_permlane32_swap_b32 v{MX0}, v{MX1}", 1),
                ("s_nop 1", 1), (f"v_max_f32 v{MX0}, v{MX0}, v{MX1}", 1)]

    THR = f2u(30.0)

    def check_ops(c):
        S = SA if c % 2 == 0 else SB

        def f():
            k(f"v_cmp_lt_f32 vcc, 0x{THR:x}, v{MX0}")
            k(f"s_cbranch_vccnz attn_slow{c}")
            k.label(f"attn_back{c}")
            t = k.tail
            t.append(f"attn_slow{c}:")
            for ins, _ in xhalf_max():
                t.append("    " + ins)
            t.append(f"    v_max_f32 v{MX0}, 0, v{MX0}")
            for e in range(32):
                t.append(f"    v_sub_f32 v{S + e}, v{S + e}, v{MX0}")
            for e in range(16):
                t.append(f"    v_sub_f32 v{NEGM + e}, v{NEGM + e}, v{MX0}")
            t.append(f"    v_exp_f32_e64 v{ALPHA}, -v{MX0}")
            t.append("    s_mov_b32 s29, 1")
            t.append(f"    v_mul_f32 v{L0}, v{L0}, v{ALPHA}")
            t.append(f"    v_mul_f32 v{L1}, v{L1}, v{ALPHA}")
            t.append("    s_nop 1")
            t.append(f"    s_branch attn_back{c}")
        return [(f, 1)]

    def resc_op(c):
        def f():
            k("s_cmp_lg_u32 s29, 0")
            k(f"s_cbranch_scc1 attn_resc{c}")
            k.label(f"attn_rback{c}")
            t = k.tail
            t.append(f"attn_resc{c}:")
            t.append("    s_nop 15")
            for e in range(64):
                t.append(f"    v_mul_f32 v{O + e}, v{O + e}, v{ALPHA}")
            t.append("    s_mov_b32 s29, 0")
            t.append("    s_nop 1")
            t.append(f"    s_branch attn_rback{c}")
        return f

    q0 = qk_steps(0)

    def qconv():
        k("s_nop 15")
        if not OPT["qscale_in_h"]:
            k(f"s_mov_b32 s36, 0x{f2u(QSCALE):x}")
            for e in range(64):
                k(f"v_mul_f32 v{SA + e}, s36, v{SA + e}")
        for e in range(32):
            k(f"v_cvt_pk_bf16_f32 v{QF + e}, v{SA + 2 * e}, v{SA + 2 * e + 1}")
        k("s_nop 1")
    steps[q0].pre.append(qconv)
    q1 = qk_steps(1)
    it = max_ops(SA) + xhalf_max()
    it += [(f"v_sub_f32 v{NEGM + e}, 0, v{MX0}", 1) for e in range(16)]
    it += [(f"v_sub_f32 v{SA + e}, v{SA + e}, v{MX0}", 1) for e in range(32)]
    it += exp_ops(SA) + [("s_nop 1", 0)]
    spread(steps, q1 + 1, q1 + 15, it)
    for i in range(7):
        c = i + 1
        S = SA if c % 2 == 0 else SB
        p = pv_steps(i)
        it = []
        if c == 1:
            it += [(f"v_add_f32 v{S + e}, v{S + e}, v{NEGM}", 1) for e in range(32)]
        it += max_ops(S) + check_ops(c)
        nchk = len(it)
        it += exp_ops(S) + [("s_nop 1", 0)]
        if i < 6:
            q = qk_steps(i + 2)
            spread(steps, p + 1, q + 15, it)
            chk = it[nchk - 1][0]
            assert any(chk in steps[x].valu for x in range(p, p + 15)), c
            steps[q + 3].valu.insert(0, resc_op(c))
        else:
            spread(steps, p + 1, p + 15, it)
            steps[p + 15].valu.append(resc_op(c))
    pv_steps(7)

    k.cur_step = -1
    q0 = []
    for g in range(5):
        for f in issue_ops(g):
            if g < OPT["apro"]:
                f()
            else:
                q0.append(f)
    k.tick(1)
    k.tick_groups = {0: 2, 9: 3, 10: 4, 13: 5}
    run_stream(k, steps, FR, 8, LOOK, cover, on_sync, queue0=q0, win=OPT["awin"])
    k.tick(6)
    k.wait(vm=k.vm_iss)

    k(f"v_add_f32 v{L0}, v{L0}, v{L1}")
    k(f"v_mov_b32 v{L1}, v{L0}")
    k("s_nop 1")
    k(f"v_permlane32_swap_b32 v{L0}, v{L1}")
    k("s_nop 1")
    k(f"v_add_f32 v{L0}, v{L0}, v{L1}")
    k(f"v_rcp_f32 v{L0}, v{L0}")
    k("s_add_u32 s30, s28, 4096")
    k("s_nop 12")
    for t in range(4):
        b = O + 16 * t
        for e in range(16):
            k(f"v_mul_f32 v{b + e}, v{b + e}, v{L0}")
        for sec in range(2):
            d = SA + 8 * t + 4 * sec
            k(f"v_cvt_pk_bf16_f32 v{d}, v{b + 4 * sec}, v{b + 4 * sec + 1}")
            k(f"v_cvt_pk_bf16_f32 v{d + 1}, v{b + 4 * sec + 2}, v{b + 4 * sec + 3}")
            k(f"v_cvt_pk_bf16_f32 v{d + 2}, v{b + 8 + 4 * sec}, v{b + 8 + 4 * sec + 1}")
            k(f"v_cvt_pk_bf16_f32 v{d + 3}, v{b + 8 + 4 * sec + 2}, v{b + 8 + 4 * sec + 3}")
            so = "s28" if t < 2 else "s30"
            k.vmem(f"buffer_store_dwordx4 {vr(d, 4)}, v{LIN}, s[20:23], {so} offen offset:{(t & 1) * 2048 + sec * 1024}{OPT['stmod']}")
    finish(k)
    return k, NV, (256, 512, NSLOT * SLOT)


def gen_gemm(mode):
    k = Kern(f"{mode}_kernel")
    glu = mode == "glu"
    NM = 2 if glu else 1
    Ktot = {"oproj": 4096, "down": 4608, "glu": 576}[mode]
    NST = {"oproj": 8, "down": 9, "glu": 9}[mode]
    WROW = 9216 if glu else 1152
    KC = Ktot // 8
    SLOT = 36864
    ACC = 0
    AF = 72 * NM
    FR = AF + 64
    BA = FR + 32
    DA = BA + 4
    AV0, AV1 = DA + 5, DA + 6
    NV = DA + 7
    guard(k, 256)
    if glu:
        k.load_ptr(4, "wg")
        k.load_ptr(6, "wu")
    else:
        k.load_ptr(4, "wo" if mode == "oproj" else "wd")
    k.load_ptr(32, "ws")
    T = 0
    k("v_lshrrev_b32 v1, 6, v0")
    k("v_and_b32 v2, 63, v0")
    k("v_readfirstlane_b32 s24, v1")
    ln = 2
    k("s_and_b32 s34, s2, 7")
    k("s_lshr_b32 s35, s2, 3")
    if glu:
        k("s_lshr_b32 s36, s34, 1")
        k("s_lshl_b32 s36, s36, 3")
        k("s_and_b32 s37, s35, 7")
        k("s_add_u32 s36, s36, s37")
        k("s_and_b32 s37, s34, 1")
        k("s_lshl_b32 s37, s37, 2")
        k("s_lshr_b32 s38, s35, 3")
        k("s_add_u32 s37, s37, s38")
        k("s_lshl_b32 s37, s37, 3")
        k("s_add_u32 s37, s37, s24")
        k(f"s_mul_i32 s26, s37, {KC * 512}")
        k("s_and_b32 s38, s24, 3")
        k("s_mov_b32 s39, 0")
        k("s_mov_b32 s27, 0")
    else:
        k("s_lshr_b32 s40, s34, 1")
        k("s_and_b32 s36, s35, 3")
        k("s_and_b32 s37, s34, 1")
        k("s_lshl_b32 s37, s37, 3")
        k("s_lshr_b32 s38, s35, 2")
        k("s_add_u32 s37, s37, s38")
        k("s_lshl_b32 s37, s37, 2")
        k("s_and_b32 s38, s24, 3")
        k("s_add_u32 s37, s37, s38")
        k("s_lshr_b32 s39, s24, 2")
        k(f"s_mul_i32 s26, s37, {KC * 512}")
        k(f"s_mul_i32 s41, s40, {NST * 4 * 2048}")
        k("s_add_u32 s26, s26, s41")
        k("s_lshl_b32 s41, s39, 12")
        k("s_add_u32 s26, s26, s41")
        k(f"s_mul_i32 s27, s40, {NST * 128 * WROW}")
        k("s_mov_b32 s38, s24")
    k("s_mul_i32 s25, s24, 4608")
    k(f"s_mul_i32 s41, s38, {16 * WROW}")
    k("s_mul_i32 s42, s36, 288")
    k("s_add_u32 s41, s41, s42")
    k(f"s_mov_b32 s42, {WROW}")
    for u in range(5):
        k(f"v_add_u32 v3, {64 * u}, v{ln}")
        k("v_mul_u32_u24 v4, 3641, v3")
        k("v_lshrrev_b32 v4, 16, v4")
        k("v_mul_u32_u24 v5, 18, v4")
        k("v_sub_u32 v5, v3, v5")
        k("v_mul_lo_u32 v4, v4, s42")
        k("v_lshl_add_u32 v4, v5, 4, v4")
        k(f"v_add_u32 v{DA + u}, s41, v4")
        if 0 < u < 4:
            k(f"v_subrev_u32 v{DA + u}, {1024 * u}, v{DA + u}")
    k(f"v_lshrrev_b32 v3, 2, v{ln}")
    k("v_mul_u32_u24 v3, 288, v3")
    k(f"v_and_b32 v4, 3, v{ln}")
    k("v_lshl_add_u32 v3, v4, 3, v3")
    k("s_mul_i32 s41, s39, 18432")
    k(f"v_add_u32 v{BA}, s41, v3")
    for s in range(1, 4):
        k(f"v_add_u32 v{BA + s}, {s * SLOT}, v{BA}")
    k(f"v_lshrrev_b32 v3, 4, v{ln}")
    k(f"v_and_b32 v4, 15, v{ln}")
    k("v_lshlrev_b32 v4, 4, v4")
    k("v_lshl_add_u32 v3, v3, 9, v4")
    k("s_lshl_b32 s41, s39, 8")
    k(f"v_add_u32 v{AV0}, s41, v3")
    k(f"v_xor_b32 v{AV1}, 0x100, v{AV0}")
    pfw, pfops = (lambda: None), (lambda: [])
    if mode == "oproj":
        pfw, pfops = pf_setup(k, ["wg", "wu"], 576 * 4608 * 2, 324, 18, 9216, 2304, NV, 3)
        NV += 3
    elif glu:
        pfw, pfops = pf_setup(k, ["wd"], 576 * 4608 * 2, 324, 0, 0, 1152 * 1152, NV, 3)
        NV += 2
    k("s_waitcnt lgkmcnt(0)")
    pfw()
    if glu:
        k("s_cmp_ge_u32 s24, 4")
        k("s_cselect_b32 s4, s6, s4")
        k("s_cselect_b32 s5, s7, s5")
        k.srd(4, 4, 576 * 4608 * 2)
        k.srd(16, 32, SZ_X, WS_H2)
        k.srd(20, 32, 2048 * 4608 * 2, WS_HH)
    else:
        k.srd(4, 4, Ktot * 576 * 2)
        k.srd(16, 32, 2048 * Ktot * 2, WS_O if mode == "oproj" else WS_HH)
        k.srd(20, 32, NSPLIT * SZ_X, WS_PART)

    cover = {}
    a_last_use = {}
    wstep = (64 if glu else 128) * WROW
    astep = 4096 if glu else 8192

    def issue_ops(g):
        ops = []
        pos = g % 4
        for u in range(5):
            def f(u=u):
                k(f"s_add_u32 m0, s25, {pos * SLOT + (4096 if u == 4 else 0)}")
                k(f"s_add_u32 s30, s27, {g * wstep}")
                if u == 4:
                    k("s_mov_b32 exec_hi, 0")
                off = f" offset:{1024 * u}" if 0 < u < 4 else ""
                r = k.vmem(f"buffer_load_dwordx4 v{DA + u}, s[4:7], s30 offen{off} lds")
                if u == 4:
                    k("s_mov_b32 exec_hi, -1")
                return r
            ops.append(f)
        for ks in range(2):
            for mt in range(2):
                def fa(ks=ks, mt=mt):
                    if g >= 4:
                        assert k.cur_step >= a_last_use[g - 4]
                    k(f"s_add_u32 s31, s26, {g * astep}")
                    d = AF + 16 * pos + 8 * ks + 4 * mt
                    return k.vmem(f"buffer_load_dwordx4 {vr(d, 4)}, v{(AV0, AV1)[mt]}, s[16:19], s31 offen offset:{ks * 2048}")
                ops.append(fa)
        last = ops[-1]

        def fin():
            cover[g] = last()
        return ops[:-1] + [fin]

    LOOK = 6

    def on_sync(g, n):
        tgt = g + OPT["gdist"]
        pf = pfops() if OPT["pf"] and tgt == NST - 1 + (OPT["pfat"] if mode == "oproj" else 0) else []
        if tgt < 4 or tgt >= NST:
            return pf
        old = tgt - 4
        assert k.slot_last_read[old] <= k.lg_done
        return issue_ops(tgt) + pf

    MF = "v_mfma_f32_16x16x32_bf16"
    steps = []
    for g in range(NST):
        pos = g % 4
        for ks in range(2):
            for mat in range(NM):
                for nt in range(9):
                    def rd(dst, pos=pos, ks=ks, mat=mat, nt=nt):
                        return [f"ds_read_b64_tr_b16 {vr(dst + 2 * e, 2)}, v{BA + pos} offset:{mat * 18432 + (32 * ks + 16 * e) * 288 + nt * 32}"
                                for e in range(2)]

                    def mf(fr, g=g, pos=pos, ks=ks, mat=mat, nt=nt):
                        out = []
                        for mt in range(2):
                            d = vr(ACC + 72 * mat + 36 * mt + 4 * nt, 4)
                            c = "0" if (g == 0 and ks == 0) else d
                            out.append(f"{MF} {d}, {vr(fr, 4)}, {vr(AF + 16 * pos + 8 * ks + 4 * mt, 4)}, {c}")
                        return out
                    st = Step(g, rd, mf)
                    st.slots = [g]
                    steps.append(st)
        a_last_use[g] = len(steps) - 1

    k.cur_step = -1
    q0 = []
    for g in range(4):
        for f in issue_ops(g):
            if g < OPT["gpro"]:
                f()
            else:
                q0.append(f)
    k.tick(1)
    k.tick_groups = {0: 2, 2: 3, 4: 4, 6: 5}
    run_stream(k, steps, FR, 8, LOOK, cover, on_sync, queue0=q0, lgbar=OPT["gdist"] == 3, win=OPT["gwin"])
    k.tick(6)
    k.wait(vm=k.vm_iss)

    k("s_nop 7")
    if glu:
        for e in range(72):
            k(f"v_mul_f32 v{e}, v{e}, v{72 + e}")
        k(f"s_mul_i32 s30, s37, {576 * 512}")
        k("s_mul_i32 s41, s36, 9")
        k("s_lshr_b32 s41, s41, 1")
        k("s_lshl_b32 s41, s41, 11")
        k("s_add_u32 s30, s30, s41")
        k("s_add_u32 s31, s30, 4096")
        k("s_add_u32 s42, s30, 8192")
        k("s_bitcmp1_b32 s36, 0")
        k("s_cbranch_scc1 glu_odd")
        for par in range(2):
            if par:
                k.label("glu_odd")
            for mt in range(2):
                P = 72 + 20 * mt
                for nt in range(9):
                    src = 36 * mt + 4 * nt
                    d = P + 2 * (nt + par)
                    k(f"v_cvt_pk_bf16_f32 v{d}, v{src}, v{src + 1}")
                    k(f"v_cvt_pk_bf16_f32 v{d + 1}, v{src + 2}, v{src + 3}")
                for blk in range(5):
                    so = ("s30", "s31", "s42")[blk >> 1]
                    off = (blk & 1) * 2048
                    va = (AV0, AV1)[mt]
                    if par == 0 and blk == 4:
                        k(f"buffer_store_dwordx2 {vr(P + 16, 2)}, v{va}, s[20:23], {so} offen offset:{off}{OPT['stmod']}")
                    elif par == 1 and blk == 0:
                        k(f"buffer_store_dwordx2 {vr(P + 2, 2)}, v{va}, s[20:23], {so} offen offset:{off + 8}{OPT['stmod']}")
                    else:
                        k(f"buffer_store_dwordx4 {vr(P + 4 * blk, 4)}, v{va}, s[20:23], {so} offen offset:{off}{OPT['stmod']}")
            if par == 0:
                k("s_branch glu_fin")
        k.label("glu_fin")
    else:
        xb = ((NST - 4) % 4) * SLOT
        assert ((NST - 3) % 4) * SLOT == xb + SLOT
        k("v_mbcnt_lo_u32_b32 v72, -1, 0")
        k("v_mbcnt_hi_u32_b32 v72, -1, v72")
        k("v_lshlrev_b32 v73, 4, v72")
        k(f"s_mul_i32 s41, s24, 9216")
        k(f"s_add_u32 s41, s41, {xb}")
        k("v_add_u32 v74, s41, v73")
        k("s_xor_b32 s42, s24, 4")
        k(f"s_mul_i32 s42, s42, 9216")
        k(f"s_add_u32 s42, s42, {xb}")
        k("v_add_u32 v75, s42, v73")
        for nt in range(9):
            k.lds(f"ds_write_b128 v74, {vr(36 + 4 * nt, 4)} offset:{nt * 1024}")
        k(f"s_mul_i32 s30, s37, {72 * 512}")
        k("s_mul_i32 s41, s36, 9")
        k("s_lshr_b32 s41, s41, 1")
        k("s_lshl_b32 s41, s41, 11")
        k("s_add_u32 s30, s30, s41")
        k(f"s_mul_i32 s41, s40, {SZ_X}")
        k("s_add_u32 s30, s30, s41")
        k("s_add_u32 s31, s30, 4096")
        k("s_add_u32 s42, s30, 8192")
        k("s_waitcnt lgkmcnt(0)")
        k.lg_done = k.lg_iss
        k("s_barrier")
        rs = []
        for nt in range(9):
            rs.append(k.lds(f"ds_read_b128 {vr(80 + 4 * nt, 4)}, v75 offset:{nt * 1024}"))
        for nt in range(9):
            k.wait(lg=rs[nt])
            for e in range(4):
                k(f"v_add_f32 v{4 * nt + e}, v{4 * nt + e}, v{80 + 4 * nt + e}")
        k("s_bitcmp1_b32 s36, 0")
        k(f"s_cbranch_scc1 {mode}_odd")
        for par in range(2):
            if par:
                k.label(f"{mode}_odd")
            P = 40
            for blk in range(5):
                for nt in (2 * blk - par, 2 * blk + 1 - par):
                    if 0 <= nt < 9:
                        d = P + 2 * (nt + par)
                        k(f"v_cvt_pk_bf16_f32 v{d}, v{4 * nt}, v{4 * nt + 1}")
                        k(f"v_cvt_pk_bf16_f32 v{d + 1}, v{4 * nt + 2}, v{4 * nt + 3}")
                so = ("s30", "s31", "s42")[blk >> 1]
                off = (blk & 1) * 2048
                if par == 0 and blk == 4:
                    k(f"buffer_store_dwordx2 {vr(P + 16, 2)}, v{AV0}, s[20:23], {so} offen offset:{off}{OPT['stmod']}")
                elif par == 1 and blk == 0:
                    k(f"buffer_store_dwordx2 {vr(P + 2, 2)}, v{AV0}, s[20:23], {so} offen offset:{off + 8}{OPT['stmod']}")
                else:
                    k(f"buffer_store_dwordx4 {vr(P + 4 * blk, 4)}, v{AV0}, s[20:23], {so} offen offset:{off}{OPT['stmod']}")
            if par == 0:
                k(f"s_branch {mode}_fin")
        k.label(f"{mode}_fin")
    finish(k)
    return k, NV, (256, 512, 4 * SLOT)


def main():
    out = sys.argv[1] if len(sys.argv) > 1 else f"cdna_kernels/{NAME}.s"
    for a in sys.argv[2:]:
        key, val = a.split("=")
        OPT[key] = eval(val)
    ref = open(f"cdna_kernels/{NAME}.s.ref").read().split("\n")
    head = [l for l in ref if l.startswith(";") and "@launch" not in l]
    ks = ([] if OPT["merge"] else [gen_mod()]) + [gen_row("ln1"), gen_attn(), gen_gemm("oproj"), gen_row("ln2"), gen_gemm("glu"),
          gen_gemm("down"), gen_row("fin")]
    s = "\n".join(head) + "\n"
    for k, nv, (gx, bx, lds) in ks:
        for _ in range(2 if OPT["dup"] else 1):
            s += f"; @launch kernel={k.name} grid=({gx},1,1) block=({bx},1,1) lds={lds}\n"
    s += '.amdgcn_target "amdgcn-amd-amdhsa--gfx950"\n.text\n'
    for k, nv, _ in ks:
        s += k.text()
    s += '.section .rodata,"a"\n'
    for k, nv, _ in ks:
        s += k.desc(nv)
    open(out, "w").write(s)
    print("wrote", out, len(s), "bytes")


if __name__ == "__main__":
    main()
```

```python
import sys, struct, os

NAME = "adaLN_cond__sliding_block_cached__glu_gated_bilinear__prompt"

WS_MOD = 0x0
WS_H = 0x10000
WS_O = 0x400000
WS_PART = 0x1400000
WS_X1 = 0x2800000
WS_H2 = 0x2C00000
WS_HH = 0x3000000
WS_PROF = 0x8000000
SZ_X = 2048 * 576 * 2
SZ_PART1 = 2048 * 576 * 4

KA = dict(x=0, k=8, v=16, wq=24, wo=32, wg=48, wu=56, wd=64, c=72, wmod=80, out=88, dbg=96, ws=104)

OPT = dict(
    qscale_in_h=False,
    prof=False,
    dup=False,
    nomfma=False,
    nords=False,
    stmod=" sc1",
    gpro=2,
    gdist=3,
    apro=2,
    gwin=1.0,
    awin=1.0,
    rowst="",
    merge=True,
    pfat=2,
    halfrd=False,
    pf=True,
    cpf=0,
)


def f2u(f):
    return struct.unpack("<I", struct.pack("<f", f))[0]


def vr(a, n=1):
    return f"v{a}" if n == 1 else f"v[{a}:{a + n - 1}]"


def sr(a, n=1):
    return f"s{a}" if n == 1 else f"s[{a}:{a + n - 1}]"


class Kern:
    def __init__(self, name):
        self.name = name
        self.L = []
        self.tail = []
        self.vm_iss = 0
        self.vm_done = 0
        self.lg_iss = 0
        self.lg_done = 0

    def __call__(self, s):
        self.L.append("    " + s)

    def label(self, l):
        self.L.append(l + ":")

    def vmem(self, s):
        self(s)
        self.vm_iss += 1
        return self.vm_iss

    def lds(self, s):
        self(s)
        self.lg_iss += 1
        return self.lg_iss

    def wait(self, vm=None, lg=None):
        parts = []
        if vm is not None and vm > self.vm_done:
            n = self.vm_iss - vm
            assert 0 <= n
            if n <= 63:
                parts.append(f"vmcnt({n})")
                self.vm_done = vm
            else:
                raise AssertionError("vmcnt overflow")
        if lg is not None and lg > self.lg_done:
            n = self.lg_iss - lg
            assert 0 <= n
            if n > 15:
                n = 15
            parts.append(f"lgkmcnt({n})")
            self.lg_done = self.lg_iss - n
        if parts:
            self("s_waitcnt " + " ".join(parts))

    def wait_all(self):
        self("s_waitcnt vmcnt(0) lgkmcnt(0)")
        self.vm_done = self.vm_iss
        self.lg_done = self.lg_iss

    def load_ptr(self, sdst, key):
        self(f"s_load_dwordx2 {sr(sdst, 2)}, s[0:1], {KA[key]}")

    def srd(self, sd, sptr, size, off=0):
        if off:
            self(f"s_add_u32 s{sd}, s{sptr}, 0x{off:x}")
            self(f"s_addc_u32 s{sd + 1}, s{sptr + 1}, 0")
        elif sd != sptr:
            self(f"s_mov_b32 s{sd}, s{sptr}")
            self(f"s_mov_b32 s{sd + 1}, s{sptr + 1}")
        self(f"s_mov_b32 s{sd + 2}, 0x{size:x}")
        self(f"s_mov_b32 s{sd + 3}, 0x00020000")

    def tick(self, i):
        if OPT["prof"]:
            self(f"s_memrealtime s[{64 + 2 * i}:{65 + 2 * i}]")
            self(f"s_memtime s[{46 + 2 * i}:{47 + 2 * i}]")
            self.nticks = max(getattr(self, "nticks", 0), i + 1)

    def prof_store(self, kidx):
        if not OPT["prof"]:
            return
        self("s_waitcnt vmcnt(0) lgkmcnt(0)")
        self.tick(7)
        self("s_load_dwordx2 s[84:85], s[0:1], 104")
        self("s_waitcnt lgkmcnt(0)")
        self.srd(88, 84, 256 * 8 * 128, WS_PROF + kidx * 256 * 8 * 128)
        self("s_lshl_b32 s86, s2, 3")
        self("s_add_u32 s86, s86, s63")
        self("s_lshl_b32 s86, s86, 7")
        self("v_mov_b32 v0, 0")
        self("s_mov_b64 exec, 1")
        for i in range(16):
            b = 64 + 2 * i if i < 8 else 46 + 2 * (i - 8)
            self(f"v_mov_b32 v2, s{b}")
            self(f"v_mov_b32 v3, s{b + 1}")
            self(f"buffer_store_dwordx2 v[2:3], v0, s[88:91], s86 offen offset:{8 * i}")
            self("s_nop 1")
        self("s_waitcnt vmcnt(0)")

    def text(self):
        out = [f".globl {self.name}", ".p2align 8", f".type {self.name},@function", f"{self.name}:"]
        out += self.L
        out += self.tail
        return "\n".join(out) + "\n"

    def desc(self, vgpr, sgpr=100):
        acc = (vgpr + 3) // 4 * 4
        return (f".p2align 6\n.amdhsa_kernel {self.name}\n"
                f"  .amdhsa_next_free_vgpr {vgpr}\n  .amdhsa_next_free_sgpr {sgpr}\n"
                f"  .amdhsa_accum_offset {acc}\n  .amdhsa_group_segment_fixed_size 0\n"
                f"  .amdhsa_kernarg_size 112\n  .amdhsa_user_sgpr_count 2\n"
                f"  .amdhsa_user_sgpr_kernarg_segment_ptr 1\n  .amdhsa_system_sgpr_workgroup_id_x 1\n"
                f".end_amdhsa_kernel\n")


def guard(k, gx):
    k(f"s_cmp_ge_u32 s2, {gx}")
    k(f"s_cbranch_scc1 {k.name}_end")
    if OPT["prof"]:
        for i in range(8):
            k(f"s_mov_b64 s[{64 + 2 * i}:{65 + 2 * i}], 0")
            k(f"s_mov_b64 s[{46 + 2 * i}:{47 + 2 * i}], 0")
        k.tick(0)
        k("v_lshrrev_b32 v1, 6, v0")
        k("s_nop 1")
        k("v_readfirstlane_b32 s63, v1")
        k("s_waitcnt lgkmcnt(0)")


KIDX = {}


def finish(k):
    k.prof_store(KIDX.setdefault(k.name, len(KIDX)))
    k.label(f"{k.name}_end")
    k("s_endpgm")


def gen_mod():
    k = Kern("mod_kernel")
    guard(k, 54)
    k.load_ptr(4, "wmod")
    k.load_ptr(8, "c")
    k.load_ptr(16, "ws")
    k("v_and_b32 v1, 7, v0")
    k("v_lshrrev_b32 v2, 3, v0")
    k("s_lshl_b32 s3, s2, 7")
    k("s_movk_i32 s20, 6912")
    k("v_mul_lo_u32 v3, v2, s20")
    k("v_lshl_add_u32 v3, v1, 4, v3")
    k("v_add_u32 v3, s3, v3")
    k("v_lshlrev_b32 v4, 1, v2")
    k("s_waitcnt lgkmcnt(0)")
    k.srd(4, 4, 576 * 3456 * 2)
    k.srd(8, 8, 576 * 2)
    k.srd(12, 16, 3456 * 4, WS_MOD)
    W = 32
    C = 8
    cs = []
    ws = []
    for i in range(18):
        cs.append(k.vmem(f"buffer_load_ushort v{C + i}, v4, s[8:11], 0 offen offset:{i * 64}"))
    for i in range(18):
        k(f"s_mov_b32 s21, {i * 32 * 6912}")
        ws.append(k.vmem(f"buffer_load_dwordx4 {vr(W + 4 * i, 4)}, v3, s[4:7], s21 offen"))
    k.wait(vm=cs[-1])
    T = 104
    k(f"s_mov_b32 s22, 0x{f2u(-1.4426950408889634):x}")
    for i in range(18):
        k(f"v_lshlrev_b32 v{C + i}, 16, v{C + i}")
    for i in range(18):
        k(f"v_mul_f32 v{T + i}, s22, v{C + i}")
    for i in range(18):
        k(f"v_exp_f32 v{T + i}, v{T + i}")
    for i in range(18):
        k(f"v_add_f32 v{T + i}, 1.0, v{T + i}")
    for i in range(18):
        k(f"v_rcp_f32 v{T + i}, v{T + i}")
    for i in range(18):
        k(f"v_mul_f32 v{C + i}, v{C + i}, v{T + i}")
    for i in range(18):
        k(f"v_cvt_pk_bf16_f32 v{C + i}, v{C + i}, v{C + i}")
    for i in range(18):
        k(f"v_and_b32 v{C + i}, 0xffff0000, v{C + i}")
    A = 104
    U = 112
    for i in range(18):
        k.wait(vm=ws[i])
        for q in range(4):
            k(f"v_lshlrev_b32 v{U + 2 * q}, 16, v{W + 4 * i + q}")
            k(f"v_and_b32 v{U + 2 * q + 1}, 0xffff0000, v{W + 4 * i + q}")
        for e in range(8):
            if i == 0:
                k(f"v_mul_f32 v{A + e}, v{C + i}, v{U + e}")
            else:
                k(f"v_fmac_f32 v{A + e}, v{C + i}, v{U + e}")
    k("v_lshlrev_b32 v5, 5, v0")
    k.lds(f"ds_write_b128 v5, {vr(A, 4)}")
    k.lds(f"ds_write_b128 v5, {vr(A + 4, 4)} offset:16")
    k("s_waitcnt lgkmcnt(0)")
    k("s_barrier")
    k("v_cmp_gt_u32 vcc, 64, v0")
    k("s_and_saveexec_b64 s[24:25], vcc")
    k(f"s_cbranch_execz {k.name}_end")
    k("v_lshlrev_b32 v5, 2, v0")
    for r in range(32):
        k(f"ds_read_b32 v{W + r}, v5 offset:{r * 256}")
    k("s_waitcnt lgkmcnt(0)")
    n = 32
    while n > 1:
        n //= 2
        for r in range(n):
            k(f"v_add_f32 v{W + r}, v{W + r}, v{W + r + n}")
    k(f"v_cvt_pk_bf16_f32 v{W}, v{W}, v{W}")
    k(f"v_and_b32 v{W}, 0xffff0000, v{W}")
    k("s_mov_b32 s26, 0")
    k("s_sub_u32 s27, s2, 9")
    k("s_cmp_lt_u32 s27, 9")
    k("s_cselect_b32 s26, 1.0, s26")
    k("s_sub_u32 s27, s2, 36")
    k("s_cmp_lt_u32 s27, 9")
    k("s_cselect_b32 s26, 1.0, s26")
    k(f"v_add_f32 v{W}, s26, v{W}")
    k(f"v_cvt_pk_bf16_f32 v{W}, v{W}, v{W}")
    k(f"v_and_b32 v{W}, 0xffff0000, v{W}")
    k("s_lshl_b32 s3, s2, 8")
    k(f"buffer_store_dword v{W}, v5, s[12:15], s3 offen")
    finish(k)
    return k, 128, (54, 256, 8192)


def dpp_sum16(k, v, t):
    for mod in ("quad_perm:[1,0,3,2]", "quad_perm:[2,3,0,1]", "row_half_mirror", "row_mirror"):
        k("s_nop 1")
        k(f"v_add_f32_dpp v{v}, v{v}, v{v} {mod} row_mask:0xf bank_mask:0xf")


def wave_sum8(k, v, t):
    k("s_nop 1")
    k(f"v_add_f32_dpp v{v}, v{v}, v{v} row_ror:8 row_mask:0xf bank_mask:0xf")
    for sw in ("v_permlane16_swap_b32", "v_permlane32_swap_b32"):
        k(f"v_mov_b32 v{t}, v{v}")
        k("s_nop 1")
        k(f"{sw} v{v}, v{t}")
        k("s_nop 1")
        k(f"v_add_f32 v{v}, v{v}, v{t}")


NSPLIT = 4


def gen_row(mode):
    k = Kern(f"{mode}_kernel")
    guard(k, 256)
    k.load_ptr(4, "x")
    k.load_ptr(6, "ws")
    k.load_ptr(28, "out")
    if mode == "ln1":
        k.load_ptr(36, "dbg")
        k.load_ptr(40, "wmod")
        k.load_ptr(44, "c")
        k.load_ptr(80, "wq")
        k.load_ptr(84, "k")
        k.load_ptr(86, "v")
        k("v_lshrrev_b32 v1, 6, v0")
        k("s_nop 0")
        k("v_readfirstlane_b32 s89, v1")
    perm = mode != "ln1"
    M, CH, AL, RM, PA, LW = 1, 2, 3, 4, 5, 6
    k(f"v_and_b32 v{M}, 7, v0")
    k(f"v_lshrrev_b32 v{CH}, 3, v0")
    k(f"v_lshlrev_b32 v{AL}, 4, v{M}")
    k(f"v_lshl_add_u32 v{AL}, v{CH}, 9, v{AL}")
    if perm:
        k(f"v_lshrrev_b32 v7, 2, v{CH}")
        k(f"v_and_b32 v{PA}, 3, v{CH}")
        k(f"v_lshlrev_b32 v{PA}, 4, v{PA}")
        k(f"v_lshl_add_u32 v{PA}, v7, 7, v{PA}")
    else:
        k(f"v_lshlrev_b32 v{PA}, 5, v{CH}")
    hi4 = 64 if perm else 16
    k(f"v_mul_u32_u24 v{RM}, 1152, v{M}")
    k(f"v_lshrrev_b32 v7, 1, v{PA}")
    k(f"v_add_u32 v{RM}, v{RM}, v7")
    k("s_lshr_b32 s30, s2, 2")
    k("s_mul_i32 s30, s30, 36864")
    k("s_and_b32 s31, s2, 3")
    k("s_lshl_b32 s31, s31, 7")
    k("s_add_u32 s30, s30, s31")
    k("s_mul_i32 s31, s2, 9216")
    k("s_waitcnt lgkmcnt(0)")
    k.srd(8, 4, SZ_X)
    k.srd(12, 6, 3456 * 4, WS_MOD)
    k.srd(16, 6, NSPLIT * SZ_X, WS_PART)
    k.srd(24, 6, SZ_X, WS_X1)
    if mode == "fin":
        k.srd(20, 28, SZ_X)
    else:
        k.srd(20, 6, SZ_X, WS_H if mode == "ln1" else WS_H2)
    X = 8
    P = 12
    G = P + 4 * NSPLIT
    SH = G + 8
    SC = SH + 8
    V = SC + 8
    U = V + 8
    NV = U + 20

    merge = mode == "ln1" and OPT["merge"]

    def ldparam(dst, chunk):
        sc = " sc1" if merge else ""
        k(f"s_movk_i32 s33, {chunk * 2304}")
        k.vmem(f"buffer_load_dwordx4 {vr(dst, 4)}, v{PA}, s[12:15], s33 offen{sc}")
        return k.vmem(f"buffer_load_dwordx4 {vr(dst + 4, 4)}, v{PA}, s[12:15], s33 offen offset:{hi4}{sc}")

    def unpack(dst, src):
        for i in range(4):
            k(f"v_lshlrev_b32 v{dst + 2 * i}, 16, v{src + i}")
            k(f"v_and_b32 v{dst + 2 * i + 1}, 0xffff0000, v{src + i}")

    if merge:
        k.srd(36, 36, 256)
        k("s_cmp_lt_u32 s2, 54")
        k("s_cbranch_scc1 ln1_mod")
        k.label("ln1_main")
        mod_part(k, P)
        xw = k.vmem(f"buffer_load_dwordx4 {vr(X, 4)}, v{RM}, s[8:11], s31 offen")
        pfi = row_prefetch(k, mode, U + 16)
        k.wait(vm=xw)
        pfi()
        unpack(V, X)
    elif mode == "ln1":
        xw = k.vmem(f"buffer_load_dwordx4 {vr(X, 4)}, v{RM}, s[8:11], s31 offen")
        ldparam(SH, 0)
        cw = ldparam(SC, 1)
        row_prefetch(k, mode, U + 16)()
        k.wait(vm=xw)
        unpack(V, X)
    else:
        pw = []
        for s in range(NSPLIT):
            k(f"s_add_u32 s32, s30, {s * SZ_X}")
            pw.append(k.vmem(f"buffer_load_dwordx4 {vr(P + 4 * s, 4)}, v{AL}, s[16:19], s32 offen"))
        if mode == "ln2":
            k.vmem(f"buffer_load_dwordx2 {vr(X, 2)}, v{RM}, s[8:11], s31 offen")
            k.vmem(f"buffer_load_dwordx2 {vr(X + 2, 2)}, v{RM}, s[8:11], s31 offen offset:32")
        else:
            k.vmem(f"buffer_load_dwordx4 {vr(X, 4)}, v{AL}, s[24:27], s30 offen")
        gw = ldparam(G, 2 if mode == "ln2" else 5)
        if mode == "ln2":
            ldparam(SH, 3)
            cw = ldparam(SC, 4)
        k.wait(vm=pw[0])
        unpack(V, P)
        for s in range(1, NSPLIT):
            k.wait(vm=pw[s])
            unpack(U, P + 4 * s)
            for e in range(8):
                k(f"v_add_f32 v{V + e}, v{V + e}, v{U + e}")
        k.wait(vm=gw)
        unpack(U, X)
        for e in range(8):
            k(f"v_fma_f32 v{V + e}, v{V + e}, v{G + e}, v{U + e}")
        for i in range(4):
            k(f"v_cvt_pk_bf16_f32 v{X + i}, v{V + 2 * i}, v{V + 2 * i + 1}")
        if mode == "fin":
            k.vmem(f"buffer_store_dwordx2 {vr(X, 2)}, v{RM}, s[20:23], s31 offen")
            k.vmem(f"buffer_store_dwordx2 {vr(X + 2, 2)}, v{RM}, s[20:23], s31 offen offset:32")
            finish(k)
            return k, NV, (256, 576, 0)
        k.vmem(f"buffer_store_dwordx4 {vr(X, 4)}, v{AL}, s[24:27], s30 offen{OPT['rowst']}")
        unpack(V, X)
    A, B, T = G, G + 1, G + 2
    k(f"v_add_f32 v{A}, v{V}, v{V + 1}")
    k(f"v_add_f32 v{T}, v{V + 2}, v{V + 3}")
    k(f"v_add_f32 v{T + 1}, v{V + 4}, v{V + 5}")
    k(f"v_add_f32 v{T + 2}, v{V + 6}, v{V + 7}")
    k(f"v_add_f32 v{A}, v{A}, v{T}")
    k(f"v_add_f32 v{T + 1}, v{T + 1}, v{T + 2}")
    k(f"v_add_f32 v{A}, v{A}, v{T + 1}")
    wave_sum8(k, A, T)
    k(f"v_mul_f32 v{A}, 0x{f2u(1.0 / 64):x}, v{A}")
    for e in range(8):
        k(f"v_sub_f32 v{U + e}, v{V + e}, v{A}")
    k(f"v_mul_f32 v{B}, v{U}, v{U}")
    k(f"v_mul_f32 v{T}, v{U + 1}, v{U + 1}")
    for e in range(2, 8):
        k(f"v_fmac_f32 v{(B, T)[e & 1]}, v{U + e}, v{U + e}")
    k(f"v_add_f32 v{B}, v{B}, v{T}")
    wave_sum8(k, B, T)
    k(f"v_mul_u32_u24 v{LW}, 80, v{M}")
    k("v_lshrrev_b32 v7, 6, v0")
    k(f"v_lshl_add_u32 v7, v7, 3, v{LW}")
    k(f"ds_write_b64 v7, {vr(A, 2)}")
    if merge:
        k("s_cmp_lg_u32 s89, 0")
        k("s_cbranch_scc1 ln1_go")
        k(f"v_mov_b32 v{U}, 0")
        k.label("ln1_poll")
        k(f"buffer_load_dword v{U + 1}, v{U}, s[36:39], 0 offen sc1")
        k("s_waitcnt vmcnt(0)")
        k(f"v_readfirstlane_b32 s40, v{U + 1}")
        k("s_cmp_lt_u32 s40, 18")
        k("s_cbranch_scc1 ln1_poll")
        k.label("ln1_go")
    k("s_waitcnt lgkmcnt(0)")
    k("s_barrier")
    if merge:
        ldparam(SH, 0)
        cw = ldparam(SC, 1)
    for i in range(4):
        k(f"ds_read_b128 {vr(U + 4 * i, 4)}, v{LW} offset:{16 * i}")
    k(f"ds_read_b64 {vr(A, 2)}, v{LW} offset:64")
    k("s_waitcnt lgkmcnt(0)")
    mu = [U + 2 * i for i in range(8)] + [A]
    m2 = [U + 2 * i + 1 for i in range(8)] + [B]
    MEAN, VAR = T, T + 1
    k(f"v_add_f32 v{MEAN}, v{mu[0]}, v{mu[1]}")
    k(f"v_add_f32 v{VAR}, v{m2[0]}, v{m2[1]}")
    for i in range(2, 9):
        k(f"v_add_f32 v{MEAN}, v{MEAN}, v{mu[i]}")
        k(f"v_add_f32 v{VAR}, v{VAR}, v{m2[i]}")
    k(f"v_mul_f32 v{MEAN}, 0x{f2u(1.0 / 9):x}, v{MEAN}")
    k(f"v_mul_f32 v{VAR}, 0x{f2u(1.0 / 64):x}, v{VAR}")
    for i in range(9):
        k(f"v_sub_f32 v{mu[i]}, v{mu[i]}, v{MEAN}")
    for i in range(9):
        k(f"v_fmac_f32 v{VAR}, v{mu[i]}, v{mu[i]}")
    k(f"v_mov_b32 v{T + 2}, 0x{f2u(1e-5):x}")
    k(f"v_fmac_f32 v{T + 2}, 0x{f2u(1.0 / 9):x}, v{VAR}")
    k(f"v_rsq_f32 v{T + 2}, v{T + 2}")
    for e in range(8):
        k(f"v_sub_f32 v{V + e}, v{V + e}, v{MEAN}")
    for e in range(8):
        k(f"v_mul_f32 v{V + e}, v{V + e}, v{T + 2}")
    k.wait(vm=cw)
    for e in range(8):
        k(f"v_fma_f32 v{V + e}, v{V + e}, v{SC + e}, v{SH + e}")
    if mode == "ln1" and OPT["qscale_in_h"]:
        for e in range(8):
            k(f"v_mul_f32 v{V + e}, 0x{f2u(QSCALE):x}, v{V + e}")
    for i in range(4):
        k(f"v_cvt_pk_bf16_f32 v{P + i}, v{V + 2 * i}, v{V + 2 * i + 1}")
    k.vmem(f"buffer_store_dwordx4 {vr(P, 4)}, v{AL}, s[20:23], s30 offen{OPT['rowst']}")
    k("s_waitcnt vmcnt(0)")
    finish(k)
    return k, NV, (256, 576, 4096)


def code_pf(k, first, last, VA):
    k("s_getpc_b64 s[96:97]")
    k.label(f"{k.name}_pc")
    k(f"s_add_u32 s96, s96, {first}-{k.name}_pc")
    k("s_addc_u32 s97, s97, 0")
    k(f"s_mov_b32 s98, {last}-{first}")
    k("s_lshr_b32 s99, s2, 3")
    k("s_lshl_b32 s99, s99, 12")
    k(f"v_and_b32 v{VA}, 31, v0")
    k(f"v_lshlrev_b32 v{VA}, 7, v{VA}")
    k(f"v_add_u32 v{VA}, s99, v{VA}")
    k("s_mov_b32 s99, 0x00020000")
    return f"buffer_load_dword v{VA}, v{VA}, s[96:99], 0 offen"


def row_prefetch(k, mode, T):
    if not OPT["pf"]:
        return lambda: None
    k("s_lshr_b32 s88, s2, 3")
    k("s_bfe_u32 s90, s2, 0x20001")
    k("s_mul_i32 s91, s88, 288")
    k(f"v_subrev_u32 v{T}, 64, v0")
    k(f"v_min_u32 v{T}, 287, v{T}")
    k(f"v_add_u32 v{T}, s91, v{T}")
    k(f"v_lshrrev_b32 v{T + 1}, 4, v{T}")
    k(f"v_and_b32 v{T}, 15, v{T}")
    k(f"v_lshlrev_b32 v{T}, 7, v{T}")
    k(f"v_lshl_add_u32 v{T}, v{T + 1}, 13, v{T}")
    k("s_lshl_b32 s91, s90, 11")
    k(f"v_and_b32 v{T + 1}, 127, v0")
    k(f"v_lshlrev_b32 v{T + 1}, 7, v{T + 1}")
    k("s_lshr_b32 s92, s88, 3")
    k("s_lshl_b32 s93, s90, 2")
    k("s_add_u32 s92, s92, s93")
    k("s_lshl_b32 s92, s92, 19")
    k("s_and_b32 s93, s88, 7")
    k("s_cmp_ge_u32 s89, 8")
    k("s_cselect_b32 s94, 13, 14")
    k("s_cselect_b32 s84, s86, s84")
    k("s_cselect_b32 s85, s87, s85")
    k("s_lshl_b32 s93, s93, s94")
    k("s_add_u32 s92, s92, s93")
    k(f"s_add_u32 s92, s92, {1536 * 256}")
    k("s_cmp_ge_u32 s89, 6")
    k("s_cselect_b64 vcc, -1, 0")
    k("s_cselect_b32 s91, s92, s91")
    k(f"v_cndmask_b32 v{T}, v{T}, v{T + 1}, vcc")
    k(f"s_mov_b32 s82, {576 * 4096 * 2}")
    k(f"s_cselect_b32 s82, {16 * 2048 * 256}, s82")
    k("s_cselect_b32 s80, s84, s80")
    k("s_cselect_b32 s81, s85, s81")
    k("s_mov_b32 s83, 0x00020000")
    cop = code_pf(k, "attn_kernel", "code_end", T + 2) if OPT["cpf"] else None

    def issue():
        k("s_cmp_eq_u32 s89, 0")
        k("s_cbranch_scc1 ln1_nopf")
        if cop:
            k(cop)
        k(f"buffer_load_dword v{T + 3}, v{T}, s[80:83], s91 offen")
        k.label("ln1_nopf")
    return issue


def mod_part(main, R):
    k = Kern("tmp")
    k.label("ln1_mod")
    C, W, A, U = R, R + 8, R + 40, R + 48
    k.srd(40, 40, 576 * 3456 * 2)
    k.srd(44, 44, 576 * 2)
    k(f"v_mul_u32_u24 v{U}, 6912, v2")
    k(f"v_lshl_add_u32 v{U}, v1, 4, v{U}")
    k(f"v_lshlrev_b32 v{U + 1}, 1, v2")
    k("s_lshl_b32 s3, s2, 7")
    cs, ws = [], []
    for i in range(8):
        cs.append(k.vmem(f"buffer_load_ushort v{C + i}, v{U + 1}, s[44:47], 0 offen offset:{i * 144}"))
    for i in range(8):
        k(f"s_add_u32 s33, s3, {i * 72 * 6912}")
        ws.append(k.vmem(f"buffer_load_dwordx4 {vr(W + 4 * i, 4)}, v{U}, s[40:43], s33 offen"))
    k.wait(vm=cs[-1])
    T = A
    for ins in (f"v_lshlrev_b32 v{{c}}, 16, v{{c}}", f"v_mul_f32 v{{t}}, 0x{f2u(-1.4426950408889634):x}, v{{c}}",
                "v_exp_f32 v{t}, v{t}", "v_add_f32 v{t}, 1.0, v{t}", "v_rcp_f32 v{t}, v{t}",
                "v_mul_f32 v{c}, v{c}, v{t}", "v_cvt_pk_bf16_f32 v{c}, v{c}, v{c}", "v_and_b32 v{c}, 0xffff0000, v{c}"):
        for i in range(8):
            k(ins.format(c=C + i, t=T + i))
    for i in range(8):
        k.wait(vm=ws[i])
        for q in range(4):
            k(f"v_lshlrev_b32 v{U + 2 * q}, 16, v{W + 4 * i + q}")
            k(f"v_and_b32 v{U + 2 * q + 1}, 0xffff0000, v{W + 4 * i + q}")
        for e in range(8):
            k(f"v_mul_f32 v{A + e}, v{C + i}, v{U + e}" if i == 0 else f"v_fmac_f32 v{A + e}, v{C + i}, v{U + e}")
    for e in range(8):
        k(f"v_add_f32_dpp v{A + e}, v{A + e}, v{A + e} row_ror:8 row_mask:0xf bank_mask:0xf")
    for sw in ("v_permlane16_swap_b32", "v_permlane32_swap_b32"):
        for e in range(8):
            k(f"v_mov_b32 v{U + e}, v{A + e}")
        for e in range(8):
            k(f"{sw} v{A + e}, v{U + e}")
        for e in range(8):
            k(f"v_add_f32 v{A + e}, v{A + e}, v{U + e}")
    k("s_lshl_b32 s33, s89, 8")
    k(f"v_lshlrev_b32 v{U}, 5, v1")
    k(f"v_add_u32 v{U}, s33, v{U}")
    k(f"ds_write_b128 v{U}, {vr(A, 4)} offset:1024")
    k(f"ds_write_b128 v{U}, {vr(A + 4, 4)} offset:1040")
    k("s_waitcnt lgkmcnt(0)")
    k("s_barrier")
    k("s_cmp_lg_u32 s89, 0")
    k("s_cbranch_scc1 ln1_main")
    k(f"v_lshlrev_b32 v{U}, 2, v0")
    for r in range(9):
        k(f"ds_read_b32 v{W + r}, v{U} offset:{1024 + r * 256}")
    k("s_mov_b32 s33, 0")
    k("s_sub_u32 s3, s2, 9")
    k("s_cmp_lt_u32 s3, 9")
    k("s_cselect_b32 s33, 1.0, s33")
    k("s_sub_u32 s3, s2, 36")
    k("s_cmp_lt_u32 s3, 9")
    k("s_cselect_b32 s33, 1.0, s33")
    k("s_lshl_b32 s3, s2, 8")
    k("s_waitcnt lgkmcnt(0)")
    for a, b in ((0, 1), (2, 3), (4, 5), (6, 7), (0, 2), (4, 6), (0, 8), (0, 4)):
        k(f"v_add_f32 v{W + a}, v{W + a}, v{W + b}")
    k(f"v_cvt_pk_bf16_f32 v{W}, v{W}, v{W}")
    k(f"v_and_b32 v{W}, 0xffff0000, v{W}")
    k(f"v_add_f32 v{W}, s33, v{W}")
    k(f"v_cvt_pk_bf16_f32 v{W}, v{W}, v{W}")
    k(f"v_and_b32 v{W}, 0xffff0000, v{W}")
    k(f"buffer_store_dword v{W}, v{U}, s[12:15], s3 offen sc1")
    k("s_cmp_ge_u32 s2, 18")
    k("s_cbranch_scc1 ln1_main")
    k(f"v_mov_b32 v{U + 1}, 1")
    k("s_waitcnt vmcnt(0)")
    k("s_mov_b64 exec, 1")
    k(f"buffer_atomic_add v{U + 1}, v{U}, s[36:39], 0 offen sc1")
    k("s_mov_b64 exec, -1")
    k("s_branch ln1_main")
    main.tail += k.L


QSCALE = (128 ** -0.5) * 1.4426950408889634


class Step:
    def __init__(self, group, reads, mfma, pre_read=None, pre=None):
        self.group = group
        self.reads = reads
        self.mfma = mfma
        self.pre = pre or []
        self.valu = []
        self.slots = []


def run_stream(k, steps, FR, NFR, LOOK, group_cover, on_sync, dma_per_step=1, queue0=None, lgbar=False, win=0.0):
    synced = set()
    queue = list(queue0 or [])
    rseq = {}
    N = len(steps)
    k.slot_last_read = {}
    for n in range(-LOOK, N):
        m = n + LOOK
        if m < N:
            st = steps[m]
            if st.group not in synced:
                while queue and group_cover.get(st.group) is None:
                    queue.pop(0)()
                assert group_cover.get(st.group) is not None, st.group
                k.wait(vm=group_cover[st.group], lg=k.lg_iss if lgbar else None)
                k("s_barrier")
                if st.group in getattr(k, "tick_groups", {}):
                    k.tick(k.tick_groups[st.group])
                synced.add(st.group)
                queue += on_sync(st.group, n)
                nx = m
                while nx < N and steps[nx].group == st.group:
                    nx += 1
                span = max(1.0, (nx - m) * win)
                rate = max(len(queue) / span, 1e-9)
                credit = 1.0
            dst = FR + 4 * (m % NFR)
            last = None
            for ins in st.reads(dst):
                if ins.startswith("ds_") and (OPT["nords"] or (OPT["halfrd"] and k.name == "glu_kernel" and m % 2)):
                    last = k.lg_iss
                elif ins.startswith("ds_"):
                    last = k.lds(ins)
                else:
                    k(ins)
            rseq[m] = last
            for s in st.slots:
                k.slot_last_read[s] = last
        if n >= 0:
            st = steps[n]
            k.wait(lg=rseq[n])
            for p in st.pre:
                if callable(p):
                    p()
                else:
                    k(p)
            for ins in st.mfma(FR + 4 * (n % NFR)):
                if not OPT["nomfma"]:
                    k(ins)
            k.cur_step = n
            if win:
                while queue and credit >= 1.0 - 1e-9:
                    queue.pop(0)()
                    credit -= 1.0
                credit += rate
            else:
                for _ in range(dma_per_step):
                    if queue:
                        queue.pop(0)()
            for p in st.valu:
                if callable(p):
                    p()
                else:
                    k(p)
    assert not queue


def spread(steps, first, last, items):
    total = sum(c for _, c in items)
    n = last - first + 1
    acc = 0.0
    for ins, c in items:
        idx = first + min(n - 1, int((acc + c * 0.5) * n / total))
        steps[idx].valu.append(ins)
        acc += c


def pf_setup(k, keys, size, per_wg, lpr, rstride, xoff, VP, T, code, wave="s24"):
    per_wave = (per_wg + 7) // 8
    assert per_wave <= 64
    for j, key in enumerate(keys):
        k.load_ptr(80 + 4 * j, key)
    k(f"v_and_b32 v{VP}, 63, v0")
    k(f"v_min_u32 v{VP}, {per_wave - 1}, v{VP}")
    k("s_lshr_b32 s88, s2, 3")
    k(f"s_mul_i32 s88, s88, {per_wg}")
    k(f"s_mul_i32 s89, {wave}, {per_wave}")
    k("s_add_u32 s88, s88, s89")
    k(f"v_add_u32 v{VP}, s88, v{VP}")
    k(f"v_min_u32 v{VP}, {32 * per_wg - 1}, v{VP}")
    if lpr:
        mul = (65536 + lpr - 1) // lpr
        assert all((i * mul) >> 16 == i // lpr for i in range(32 * per_wg))
        k(f"v_mul_u32_u24 v{T}, {mul}, v{VP}")
        k(f"v_lshrrev_b32 v{T}, 16, v{T}")
        k(f"v_mul_u32_u24 v{T}, {rstride // 128 - lpr}, v{T}")
        k(f"v_add_u32 v{VP}, v{VP}, v{T}")
    k(f"v_lshlrev_b32 v{VP}, 7, v{VP}")
    k("s_bfe_u32 s88, s2, 0x20001")
    k(f"s_mul_i32 s88, s88, {xoff}")
    k(f"v_add_u32 v{VP}, s88, v{VP}")
    cop = code_pf(k, code[0], code[1], VP + 1 + len(keys)) if OPT["cpf"] >= 2 else None

    def after_wait():
        for j in range(len(keys)):
            k.srd(80 + 4 * j, 80 + 4 * j, size)

    def ops():
        return [lambda j=j: k.vmem(f"buffer_load_dword v{VP + 1 + j}, v{VP}, s[{80 + 4 * j}:{83 + 4 * j}], 0 offen")
                for j in range(len(keys))] + ([lambda: k.vmem(cop)] if cop else [])
    return after_wait, ops


def gen_attn():
    k = Kern("attn_kernel")
    O, NEGM, SA, SB, QF, FR = 0, 64, 80, 112, 144, 176
    KAD, VAD, WAD = 208, 216, 220
    L0, L1, MX0, MX1, ALPHA, TMP = 224, 225, 226, 227, 228, 229
    DK0, DK1, DV, DW0, DW1, LIN = 230, 231, 232, 233, 234, 235
    NV = 236
    SLOT = 16384
    NSLOT = 10
    guard(k, 256)
    k.load_ptr(4, "wq")
    k.load_ptr(8, "k")
    k.load_ptr(12, "v")
    k.load_ptr(32, "ws")
    T = FR
    k(f"v_lshrrev_b32 v{T}, 6, v0")
    k(f"v_and_b32 v{T + 1}, 63, v0")
    k(f"v_readfirstlane_b32 s24, v{T}")
    ln = T + 1
    k("s_and_b32 s34, s2, 6")
    k("s_lshl_b32 s34, s34, 2")
    k("s_bfe_u32 s35, s2, 0x30003")
    k("s_add_u32 s34, s34, s35")
    k("s_and_b32 s35, s2, 1")
    k("s_lshl_b32 s35, s35, 2")
    k("s_lshr_b32 s36, s2, 6")
    k("s_add_u32 s35, s35, s36")
    k("s_lshl_b32 s35, s35, 3")
    k("s_add_u32 s35, s35, s24")
    k("s_lshl_b32 s25, s24, 11")
    k("s_mul_i32 s26, s35, 36864")
    k("s_lshr_b32 s27, s34, 1")
    k("s_lshl_b32 s27, s27, 19")
    k(f"s_add_u32 s27, s27, {1536 * 256}")
    k("s_lshl_b32 s28, s35, 18")
    k("s_lshl_b32 s36, s34, 13")
    k("s_add_u32 s28, s28, s36")
    k("s_mov_b32 s29, 0")
    G4, P16, R8 = T + 2, T + 3, T + 4
    k(f"v_lshrrev_b32 v{G4}, 4, v{ln}")
    k(f"v_and_b32 v{P16}, 15, v{ln}")
    k(f"v_lshlrev_b32 v{LIN}, 4, v{ln}")
    k("s_lshl_b32 s36, s24, 3")
    k(f"v_add_u32 v{R8}, s36, v{G4}")
    a, b = T + 5, T + 6
    k(f"v_lshlrev_b32 v{a}, 2, v{G4}")
    k(f"v_xor_b32 v{a}, v{a}, v{P16}")
    k(f"v_lshlrev_b32 v{a}, 4, v{a}")
    k(f"v_lshl_add_u32 v{DV}, v{R8}, 8, v{a}")
    k(f"v_lshl_add_u32 v{DW0}, v{R8}, 13, v{a}")
    k("s_lshl_b32 s36, s34, 8")
    k(f"v_add_u32 v{DW0}, s36, v{DW0}")
    k(f"v_add_u32 v{DW1}, {32768 - 1024}, v{DW0}")
    k(f"v_and_b32 v{a}, 15, v{R8}")
    k(f"v_xor_b32 v{a}, v{a}, v{P16}")
    k(f"v_lshlrev_b32 v{a}, 4, v{a}")
    k(f"v_lshl_add_u32 v{DK0}, v{R8}, 8, v{a}")
    k(f"v_xor_b32 v{DK1}, 64, v{DK0}")
    HF = T + 7
    k(f"v_lshrrev_b32 v{HF}, 5, v{ln}")
    k(f"v_xor_b32 v{a}, v{HF}, v{P16}")
    k(f"v_lshlrev_b32 v{a}, 4, v{a}")
    k(f"v_and_b32 v{b}, 31, v{ln}")
    k(f"v_lshl_add_u32 v{KAD}, v{b}, 8, v{a}")
    for s in range(1, 8):
        k(f"v_xor_b32 v{KAD + s}, {s << 5}, v{KAD}")
    R, C, DS = T + 8, T + 9, T + 10
    k(f"v_bfe_u32 v{R}, v{ln}, 2, 2")
    k(f"v_and_b32 v{C}, 3, v{ln}")
    k(f"v_bfe_u32 v{DS}, v{ln}, 4, 1")
    k(f"v_mul_u32_u24 v{a}, {256 + 64}, v{R}")
    k(f"v_lshl_add_u32 v{a}, v{DS}, 5, v{a}")
    k(f"v_lshl_add_u32 v{VAD}, v{HF}, 10, v{a}")
    k(f"v_lshl_add_u32 v{VAD}, v{C}, 3, v{VAD}")
    k(f"v_lshl_add_u32 v{WAD}, v{HF}, 11, v{a}")
    k(f"v_and_b32 v{b}, 1, v{C}")
    k(f"v_lshl_add_u32 v{WAD}, v{b}, 4, v{WAD}")
    k(f"v_lshrrev_b32 v{b}, 1, v{C}")
    k(f"v_lshl_add_u32 v{WAD}, v{b}, 3, v{WAD}")
    for t in range(1, 4):
        k(f"v_xor_b32 v{VAD + t}, {t << 6}, v{VAD}")
        k(f"v_xor_b32 v{WAD + t}, {t << 6}, v{WAD}")
    k(f"v_mov_b32 v{L0}, 0")
    k(f"v_mov_b32 v{L1}, 0")
    pfw, pfops = pf_setup(k, ["wo"], 4096 * 576 * 2, 288, 0, 0, 1024 * 1152, NV, T, ("oproj_kernel", "glu_kernel"))
    NV += 3
    k("s_waitcnt lgkmcnt(0)")
    pfw()
    k.srd(4, 4, 576 * 4096 * 2)
    k.srd(8, 8, 16 * 2048 * 128 * 2)
    k.srd(12, 12, 16 * 2048 * 128 * 2)
    k.srd(16, 32, SZ_X, WS_H)
    k.srd(20, 32, 2048 * 4096 * 2, WS_O)

    slots = [("W", s) for s in range(9)] + [("K", 0), ("K", 1)]
    for i in range(6):
        slots += [("V", i), ("K", i + 2)]
    slots += [("V", 6), ("V", 7)]
    sidx = {s: i for i, s in enumerate(slots)}
    groups = [[i] for i in range(9)] + [[9 + 2 * g, 10 + 2 * g] for g in range(8)]
    gof = {}
    for g, ss in enumerate(groups):
        for s in ss:
            gof[s] = g
    cover = {}
    h_last_use = {}

    def issue_ops(g):
        ops = []
        for idx in groups[g]:
            kind, c = slots[idx]
            pos = idx % NSLOT

            def mk(kind=kind, c=c, pos=pos, u=0, idx=idx):
                def f():
                    k(f"s_add_u32 m0, s25, {pos * SLOT}")
                    if kind == "W":
                        k(f"s_mov_b32 s30, {c * 64 * 8192}")
                        va, srd = (DW0, DW1)[u], "s[4:7]"
                    else:
                        k(f"s_add_u32 s30, s27, {c * 16384}")
                        if kind == "K":
                            va, srd = (DK0, DK1)[u], "s[8:11]"
                        else:
                            va, srd = DV, "s[12:15]"
                    off = " offset:1024" if u else ""
                    return k.vmem(f"buffer_load_dwordx4 v{va}, {srd}, s30 offen{off} lds")
                return f
            ops.append(mk(u=0))
            ops.append(mk(u=1))
            if kind == "W":
                for ks in range(4):
                    def fh(c=c, ks=ks):
                        if c >= 5:
                            assert k.cur_step >= h_last_use[c - 5], (c, k.cur_step)
                        k(f"s_add_u32 s31, s26, {c * 4096}")
                        return k.vmem(f"buffer_load_dwordx4 {vr(16 * (c % 5) + 4 * ks, 4)}, v{LIN}, s[16:19], s31 offen offset:{ks * 1024}")
                    ops.append(fh)
        last = ops[-1]

        def fin():
            cover[g] = last()
        return ops[:-1] + [fin]

    def on_sync(g, n):
        tgt = g + 3
        if g < 2 or tgt >= len(groups):
            return []
        for idx in groups[tgt]:
            old = idx - NSLOT
            if old >= 0:
                assert old in k.slot_last_read and k.slot_last_read[old] <= k.lg_done, (g, idx)
                assert all(old not in st.slots for st in steps[max(0, n + LOOK):]), (g, idx)
        return issue_ops(tgt) + (pfops() if OPT["pf"] and tgt == len(groups) - 1 else [])

    bias = {"K": 0, "V": 0, "W": 0}
    setregs = {"K": (KAD, 8), "V": (VAD, 4), "W": (WAD, 4)}

    def fix_bias(kind, base):
        out = []
        if not (bias[kind] <= base and base + SLOT <= bias[kind] + 65536):
            d = base - bias[kind]
            r0, n = setregs[kind]
            for i in range(n):
                if d > 0:
                    out.append(f"v_add_u32 v{r0 + i}, {d}, v{r0 + i}")
                else:
                    out.append(f"v_subrev_u32 v{r0 + i}, {-d}, v{r0 + i}")
            bias[kind] = base
        return out

    def tr_reads(kind, idx, t, row0, estep):
        def f(dst):
            base = (idx % NSLOT) * SLOT
            out = fix_bias(kind, base)
            r0 = setregs[kind][0]
            for e in range(2):
                off = base - bias[kind] + (row0 + estep * e) * 256
                out.append(f"ds_read_b64_tr_b16 {vr(dst + 2 * e, 2)}, v{r0 + t} offset:{off}")
            return out
        return f

    def k_reads(idx, j, s):
        def f(dst):
            base = (idx % NSLOT) * SLOT
            out = fix_bias("K", base)
            off = base - bias["K"] + j * 8192
            out.append(f"ds_read_b128 {vr(dst, 4)}, v{KAD + s} offset:{off}")
            return out
        return f

    MF = "v_mfma_f32_32x32x16_bf16"
    steps = []
    LOOK = 6
    for s in range(9):
        idx = sidx[("W", s)]
        for ks in range(4):
            for t in range(4):
                d = vr(SA + 16 * t, 16)
                c = "0" if (s == 0 and ks == 0) else d
                hb = vr(16 * (s % 5) + 4 * ks, 4)
                st = Step(gof[idx], tr_reads("W", idx, t, 16 * ks, 4),
                          lambda fr, d=d, c=c, hb=hb: [f"{MF} {d}, {vr(fr, 4)}, {hb}, {c}"])
                st.slots = [idx]
                steps.append(st)
        h_last_use[s] = len(steps) - 1

    def qk_steps(c):
        idx = sidx[("K", c)]
        S = SA if c % 2 == 0 else SB
        first = len(steps)
        for s in range(8):
            for j in range(2):
                d = vr(S + 16 * j, 16)
                cc = d if s else ("0" if c < 2 else vr(NEGM, 16))
                st = Step(gof[idx], k_reads(idx, j, s),
                          lambda fr, d=d, cc=cc, s=s: [f"{MF} {d}, {vr(fr, 4)}, {vr(QF + 4 * s, 4)}, {cc}"])
                st.slots = [idx]
                steps.append(st)
        return first

    def pv_steps(c):
        idx = sidx[("V", c)]
        S = SA if c % 2 == 0 else SB
        first = len(steps)
        for kk in range(4):
            for t in range(4):
                d = vr(O + 16 * t, 16)
                cc = "0" if (c == 0 and kk == 0) else d
                pb = vr(S + 8 * kk, 4)
                st = Step(gof[idx], tr_reads("V", idx, t, 16 * kk, 8),
                          lambda fr, d=d, cc=cc, pb=pb: [f"{MF} {d}, {vr(fr, 4)}, {pb}, {cc}"])
                st.slots = [idx]
                steps.append(st)
        return first

    def max_ops(S):
        it = [(f"v_max3_f32 v{MX0}, v{S}, v{S + 1}, v{S + 2}", 1), (f"v_max3_f32 v{MX1}, v{S + 3}, v{S + 4}, v{S + 5}", 1)]
        for q in range(13):
            m = (MX0, MX1)[q % 2]
            it.append((f"v_max3_f32 v{m}, v{m}, v{S + 6 + 2 * q}, v{S + 7 + 2 * q}", 1))
        it.append((f"v_max_f32 v{MX0}, v{MX0}, v{MX1}", 1))
        return it

    def exp_ops(S):
        it = []
        for g in range(4):
            b = S + 8 * g
            for e in range(8):
                it.append((f"v_exp_f32 v{b + e}, v{b + e}", 2))
            for e in range(8):
                l = (L0, L1)[e % 2]
                it.append((f"v_add_f32 v{l}, v{l}, v{b + e}", 1))
            for e in range(4):
                it.append((f"v_cvt_pk_bf16_f32 v{b + e}, v{b + 2 * e}, v{b + 2 * e + 1}", 1))
        return it

    def xhalf_max():
        return [(f"v_mov_b32 v{MX1}, v{MX0}", 1), ("s_nop 1", 1), (f"v_permlane32_swap_b32 v{MX0}, v{MX1}", 1),
                ("s_nop 1", 1), (f"v_max_f32 v{MX0}, v{MX0}, v{MX1}", 1)]

    THR = f2u(30.0)

    def check_ops(c):
        S = SA if c % 2 == 0 else SB

        def f():
            k(f"v_cmp_lt_f32 vcc, 0x{THR:x}, v{MX0}")
            k(f"s_cbranch_vccnz attn_slow{c}")
            k.label(f"attn_back{c}")
            t = k.tail
            t.append(f"attn_slow{c}:")
            for ins, _ in xhalf_max():
                t.append("    " + ins)
            t.append(f"    v_max_f32 v{MX0}, 0, v{MX0}")
            for e in range(32):
                t.append(f"    v_sub_f32 v{S + e}, v{S + e}, v{MX0}")
            for e in range(16):
                t.append(f"    v_sub_f32 v{NEGM + e}, v{NEGM + e}, v{MX0}")
            t.append(f"    v_exp_f32_e64 v{ALPHA}, -v{MX0}")
            t.append("    s_mov_b32 s29, 1")
            t.append(f"    v_mul_f32 v{L0}, v{L0}, v{ALPHA}")
            t.append(f"    v_mul_f32 v{L1}, v{L1}, v{ALPHA}")
            t.append("    s_nop 1")
            t.append(f"    s_branch attn_back{c}")
        return [(f, 1)]

    def resc_op(c):
        def f():
            k("s_cmp_lg_u32 s29, 0")
            k(f"s_cbranch_scc1 attn_resc{c}")
            k.label(f"attn_rback{c}")
            t = k.tail
            t.append(f"attn_resc{c}:")
            t.append("    s_nop 15")
            for e in range(64):
                t.append(f"    v_mul_f32 v{O + e}, v{O + e}, v{ALPHA}")
            t.append("    s_mov_b32 s29, 0")
            t.append("    s_nop 1")
            t.append(f"    s_branch attn_rback{c}")
        return f

    q0 = qk_steps(0)

    def qconv():
        k("s_nop 15")
        if not OPT["qscale_in_h"]:
            k(f"s_mov_b32 s36, 0x{f2u(QSCALE):x}")
            for e in range(64):
                k(f"v_mul_f32 v{SA + e}, s36, v{SA + e}")
        for e in range(32):
            k(f"v_cvt_pk_bf16_f32 v{QF + e}, v{SA + 2 * e}, v{SA + 2 * e + 1}")
        k("s_nop 1")
    steps[q0].pre.append(qconv)
    q1 = qk_steps(1)
    it = max_ops(SA) + xhalf_max()
    it += [(f"v_sub_f32 v{NEGM + e}, 0, v{MX0}", 1) for e in range(16)]
    it += [(f"v_sub_f32 v{SA + e}, v{SA + e}, v{MX0}", 1) for e in range(32)]
    it += exp_ops(SA) + [("s_nop 1", 0)]
    spread(steps, q1 + 1, q1 + 15, it)
    for i in range(7):
        c = i + 1
        S = SA if c % 2 == 0 else SB
        p = pv_steps(i)
        it = []
        if c == 1:
            it += [(f"v_add_f32 v{S + e}, v{S + e}, v{NEGM}", 1) for e in range(32)]
        it += max_ops(S) + check_ops(c)
        nchk = len(it)
        it += exp_ops(S) + [("s_nop 1", 0)]
        if i < 6:
            q = qk_steps(i + 2)
            spread(steps, p + 1, q + 15, it)
            chk = it[nchk - 1][0]
            assert any(chk in steps[x].valu for x in range(p, p + 15)), c
            steps[q + 3].valu.insert(0, resc_op(c))
        else:
            spread(steps, p + 1, p + 15, it)
            steps[p + 15].valu.append(resc_op(c))
    pv_steps(7)

    k.cur_step = -1
    q0 = []
    for g in range(5):
        for f in issue_ops(g):
            if g < OPT["apro"]:
                f()
            else:
                q0.append(f)
    k.tick(1)
    k.tick_groups = {0: 2, 9: 3, 10: 4, 13: 5}
    run_stream(k, steps, FR, 8, LOOK, cover, on_sync, queue0=q0, win=OPT["awin"])
    k.tick(6)
    k.wait(vm=k.vm_iss)

    k(f"v_add_f32 v{L0}, v{L0}, v{L1}")
    k(f"v_mov_b32 v{L1}, v{L0}")
    k("s_nop 1")
    k(f"v_permlane32_swap_b32 v{L0}, v{L1}")
    k("s_nop 1")
    k(f"v_add_f32 v{L0}, v{L0}, v{L1}")
    k(f"v_rcp_f32 v{L0}, v{L0}")
    k("s_add_u32 s30, s28, 4096")
    k("s_nop 12")
    for t in range(4):
        b = O + 16 * t
        for e in range(16):
            k(f"v_mul_f32 v{b + e}, v{b + e}, v{L0}")
        for sec in range(2):
            d = SA + 8 * t + 4 * sec
            k(f"v_cvt_pk_bf16_f32 v{d}, v{b + 4 * sec}, v{b + 4 * sec + 1}")
            k(f"v_cvt_pk_bf16_f32 v{d + 1}, v{b + 4 * sec + 2}, v{b + 4 * sec + 3}")
            k(f"v_cvt_pk_bf16_f32 v{d + 2}, v{b + 8 + 4 * sec}, v{b + 8 + 4 * sec + 1}")
            k(f"v_cvt_pk_bf16_f32 v{d + 3}, v{b + 8 + 4 * sec + 2}, v{b + 8 + 4 * sec + 3}")
            so = "s28" if t < 2 else "s30"
            k.vmem(f"buffer_store_dwordx4 {vr(d, 4)}, v{LIN}, s[20:23], {so} offen offset:{(t & 1) * 2048 + sec * 1024}{OPT['stmod']}")
    finish(k)
    return k, NV, (256, 512, NSLOT * SLOT)


def gen_gemm(mode):
    k = Kern(f"{mode}_kernel")
    glu = mode == "glu"
    NM = 2 if glu else 1
    Ktot = {"oproj": 4096, "down": 4608, "glu": 576}[mode]
    NST = {"oproj": 8, "down": 9, "glu": 9}[mode]
    WROW = 9216 if glu else 1152
    KC = Ktot // 8
    SLOT = 36864
    ACC = 0
    AF = 72 * NM
    FR = AF + 64
    BA = FR + 32
    DA = BA + 4
    AV0, AV1 = DA + 5, DA + 6
    NV = DA + 7
    guard(k, 256)
    if glu:
        k.load_ptr(4, "wg")
        k.load_ptr(6, "wu")
    else:
        k.load_ptr(4, "wo" if mode == "oproj" else "wd")
    k.load_ptr(32, "ws")
    T = 0
    k("v_lshrrev_b32 v1, 6, v0")
    k("v_and_b32 v2, 63, v0")
    k("v_readfirstlane_b32 s24, v1")
    ln = 2
    k("s_and_b32 s34, s2, 7")
    k("s_lshr_b32 s35, s2, 3")
    if glu:
        k("s_lshr_b32 s36, s34, 1")
        k("s_lshl_b32 s36, s36, 3")
        k("s_and_b32 s37, s35, 7")
        k("s_add_u32 s36, s36, s37")
        k("s_and_b32 s37, s34, 1")
        k("s_lshl_b32 s37, s37, 2")
        k("s_lshr_b32 s38, s35, 3")
        k("s_add_u32 s37, s37, s38")
        k("s_lshl_b32 s37, s37, 3")
        k("s_add_u32 s37, s37, s24")
        k(f"s_mul_i32 s26, s37, {KC * 512}")
        k("s_and_b32 s38, s24, 3")
        k("s_mov_b32 s39, 0")
        k("s_mov_b32 s27, 0")
    else:
        k("s_lshr_b32 s40, s34, 1")
        k("s_and_b32 s36, s35, 3")
        k("s_and_b32 s37, s34, 1")
        k("s_lshl_b32 s37, s37, 3")
        k("s_lshr_b32 s38, s35, 2")
        k("s_add_u32 s37, s37, s38")
        k("s_lshl_b32 s37, s37, 2")
        k("s_and_b32 s38, s24, 3")
        k("s_add_u32 s37, s37, s38")
        k("s_lshr_b32 s39, s24, 2")
        k(f"s_mul_i32 s26, s37, {KC * 512}")
        k(f"s_mul_i32 s41, s40, {NST * 4 * 2048}")
        k("s_add_u32 s26, s26, s41")
        k("s_lshl_b32 s41, s39, 12")
        k("s_add_u32 s26, s26, s41")
        k(f"s_mul_i32 s27, s40, {NST * 128 * WROW}")
        k("s_mov_b32 s38, s24")
    k("s_mul_i32 s25, s24, 4608")
    k(f"s_mul_i32 s41, s38, {16 * WROW}")
    k("s_mul_i32 s42, s36, 288")
    k("s_add_u32 s41, s41, s42")
    k(f"s_mov_b32 s42, {WROW}")
    for u in range(5):
        k(f"v_add_u32 v3, {64 * u}, v{ln}")
        k("v_mul_u32_u24 v4, 3641, v3")
        k("v_lshrrev_b32 v4, 16, v4")
        k("v_mul_u32_u24 v5, 18, v4")
        k("v_sub_u32 v5, v3, v5")
        k("v_mul_lo_u32 v4, v4, s42")
        k("v_lshl_add_u32 v4, v5, 4, v4")
        k(f"v_add_u32 v{DA + u}, s41, v4")
        if 0 < u < 4:
            k(f"v_subrev_u32 v{DA + u}, {1024 * u}, v{DA + u}")
    k(f"v_lshrrev_b32 v3, 2, v{ln}")
    k("v_mul_u32_u24 v3, 288, v3")
    k(f"v_and_b32 v4, 3, v{ln}")
    k("v_lshl_add_u32 v3, v4, 3, v3")
    k("s_mul_i32 s41, s39, 18432")
    k(f"v_add_u32 v{BA}, s41, v3")
    for s in range(1, 4):
        k(f"v_add_u32 v{BA + s}, {s * SLOT}, v{BA}")
    k(f"v_lshrrev_b32 v3, 4, v{ln}")
    k(f"v_and_b32 v4, 15, v{ln}")
    k("v_lshlrev_b32 v4, 4, v4")
    k("v_lshl_add_u32 v3, v3, 9, v4")
    k("s_lshl_b32 s41, s39, 8")
    k(f"v_add_u32 v{AV0}, s41, v3")
    k(f"v_xor_b32 v{AV1}, 0x100, v{AV0}")
    pfw, pfops = (lambda: None), (lambda: [])
    if mode == "oproj":
        pfw, pfops = pf_setup(k, ["wg", "wu"], 576 * 4608 * 2, 324, 18, 9216, 2304, NV, 3, ("ln2_kernel", "down_kernel"))
        NV += 4
    elif glu:
        pfw, pfops = pf_setup(k, ["wd"], 576 * 4608 * 2, 324, 0, 0, 1152 * 1152, NV, 3, ("down_kernel", "code_end"))
        NV += 3
    k("s_waitcnt lgkmcnt(0)")
    pfw()
    if glu:
        k("s_cmp_ge_u32 s24, 4")
        k("s_cselect_b32 s4, s6, s4")
        k("s_cselect_b32 s5, s7, s5")
        k.srd(4, 4, 576 * 4608 * 2)
        k.srd(16, 32, SZ_X, WS_H2)
        k.srd(20, 32, 2048 * 4608 * 2, WS_HH)
    else:
        k.srd(4, 4, Ktot * 576 * 2)
        k.srd(16, 32, 2048 * Ktot * 2, WS_O if mode == "oproj" else WS_HH)
        k.srd(20, 32, NSPLIT * SZ_X, WS_PART)

    cover = {}
    a_last_use = {}
    wstep = (64 if glu else 128) * WROW
    astep = 4096 if glu else 8192

    def issue_ops(g):
        ops = []
        pos = g % 4
        for u in range(5):
            def f(u=u):
                k(f"s_add_u32 m0, s25, {pos * SLOT + (4096 if u == 4 else 0)}")
                k(f"s_add_u32 s30, s27, {g * wstep}")
                if u == 4:
                    k("s_mov_b32 exec_hi, 0")
                off = f" offset:{1024 * u}" if 0 < u < 4 else ""
                r = k.vmem(f"buffer_load_dwordx4 v{DA + u}, s[4:7], s30 offen{off} lds")
                if u == 4:
                    k("s_mov_b32 exec_hi, -1")
                return r
            ops.append(f)
        for ks in range(2):
            for mt in range(2):
                def fa(ks=ks, mt=mt):
                    if g >= 4:
                        assert k.cur_step >= a_last_use[g - 4]
                    k(f"s_add_u32 s31, s26, {g * astep}")
                    d = AF + 16 * pos + 8 * ks + 4 * mt
                    return k.vmem(f"buffer_load_dwordx4 {vr(d, 4)}, v{(AV0, AV1)[mt]}, s[16:19], s31 offen offset:{ks * 2048}")
                ops.append(fa)
        last = ops[-1]

        def fin():
            cover[g] = last()
        return ops[:-1] + [fin]

    LOOK = 6

    def on_sync(g, n):
        tgt = g + OPT["gdist"]
        pf = pfops() if OPT["pf"] and tgt == NST - 1 + (OPT["pfat"] if mode == "oproj" else 0) else []
        if tgt < 4 or tgt >= NST:
            return pf
        old = tgt - 4
        assert k.slot_last_read[old] <= k.lg_done
        return issue_ops(tgt) + pf

    MF = "v_mfma_f32_16x16x32_bf16"
    steps = []
    for g in range(NST):
        pos = g % 4
        for ks in range(2):
            for mat in range(NM):
                for nt in range(9):
                    def rd(dst, pos=pos, ks=ks, mat=mat, nt=nt):
                        return [f"ds_read_b64_tr_b16 {vr(dst + 2 * e, 2)}, v{BA + pos} offset:{mat * 18432 + (32 * ks + 16 * e) * 288 + nt * 32}"
                                for e in range(2)]

                    def mf(fr, g=g, pos=pos, ks=ks, mat=mat, nt=nt):
                        out = []
                        for mt in range(2):
                            d = vr(ACC + 72 * mat + 36 * mt + 4 * nt, 4)
                            c = "0" if (g == 0 and ks == 0) else d
                            out.append(f"{MF} {d}, {vr(fr, 4)}, {vr(AF + 16 * pos + 8 * ks + 4 * mt, 4)}, {c}")
                        return out
                    st = Step(g, rd, mf)
                    st.slots = [g]
                    steps.append(st)
        a_last_use[g] = len(steps) - 1

    k.cur_step = -1
    q0 = []
    for g in range(4):
        for f in issue_ops(g):
            if g < OPT["gpro"]:
                f()
            else:
                q0.append(f)
    k.tick(1)
    k.tick_groups = {0: 2, 2: 3, 4: 4, 6: 5}
    run_stream(k, steps, FR, 8, LOOK, cover, on_sync, queue0=q0, lgbar=OPT["gdist"] == 3, win=OPT["gwin"])
    k.tick(6)
    k.wait(vm=k.vm_iss)

    k("s_nop 7")
    if glu:
        for e in range(72):
            k(f"v_mul_f32 v{e}, v{e}, v{72 + e}")
        k(f"s_mul_i32 s30, s37, {576 * 512}")
        k("s_mul_i32 s41, s36, 9")
        k("s_lshr_b32 s41, s41, 1")
        k("s_lshl_b32 s41, s41, 11")
        k("s_add_u32 s30, s30, s41")
        k("s_add_u32 s31, s30, 4096")
        k("s_add_u32 s42, s30, 8192")
        k("s_bitcmp1_b32 s36, 0")
        k("s_cbranch_scc1 glu_odd")
        for par in range(2):
            if par:
                k.label("glu_odd")
            for mt in range(2):
                P = 72 + 20 * mt
                for nt in range(9):
                    src = 36 * mt + 4 * nt
                    d = P + 2 * (nt + par)
                    k(f"v_cvt_pk_bf16_f32 v{d}, v{src}, v{src + 1}")
                    k(f"v_cvt_pk_bf16_f32 v{d + 1}, v{src + 2}, v{src + 3}")
                for blk in range(5):
                    so = ("s30", "s31", "s42")[blk >> 1]
                    off = (blk & 1) * 2048
                    va = (AV0, AV1)[mt]
                    if par == 0 and blk == 4:
                        k(f"buffer_store_dwordx2 {vr(P + 16, 2)}, v{va}, s[20:23], {so} offen offset:{off}{OPT['stmod']}")
                    elif par == 1 and blk == 0:
                        k(f"buffer_store_dwordx2 {vr(P + 2, 2)}, v{va}, s[20:23], {so} offen offset:{off + 8}{OPT['stmod']}")
                    else:
                        k(f"buffer_store_dwordx4 {vr(P + 4 * blk, 4)}, v{va}, s[20:23], {so} offen offset:{off}{OPT['stmod']}")
            if par == 0:
                k("s_branch glu_fin")
        k.label("glu_fin")
    else:
        xb = ((NST - 4) % 4) * SLOT
        assert ((NST - 3) % 4) * SLOT == xb + SLOT
        k("v_mbcnt_lo_u32_b32 v72, -1, 0")
        k("v_mbcnt_hi_u32_b32 v72, -1, v72")
        k("v_lshlrev_b32 v73, 4, v72")
        k(f"s_mul_i32 s41, s24, 9216")
        k(f"s_add_u32 s41, s41, {xb}")
        k("v_add_u32 v74, s41, v73")
        k("s_xor_b32 s42, s24, 4")
        k(f"s_mul_i32 s42, s42, 9216")
        k(f"s_add_u32 s42, s42, {xb}")
        k("v_add_u32 v75, s42, v73")
        for nt in range(9):
            k.lds(f"ds_write_b128 v74, {vr(36 + 4 * nt, 4)} offset:{nt * 1024}")
        k(f"s_mul_i32 s30, s37, {72 * 512}")
        k("s_mul_i32 s41, s36, 9")
        k("s_lshr_b32 s41, s41, 1")
        k("s_lshl_b32 s41, s41, 11")
        k("s_add_u32 s30, s30, s41")
        k(f"s_mul_i32 s41, s40, {SZ_X}")
        k("s_add_u32 s30, s30, s41")
        k("s_add_u32 s31, s30, 4096")
        k("s_add_u32 s42, s30, 8192")
        k("s_waitcnt lgkmcnt(0)")
        k.lg_done = k.lg_iss
        k("s_barrier")
        rs = []
        for nt in range(9):
            rs.append(k.lds(f"ds_read_b128 {vr(80 + 4 * nt, 4)}, v75 offset:{nt * 1024}"))
        for nt in range(9):
            k.wait(lg=rs[nt])
            for e in range(4):
                k(f"v_add_f32 v{4 * nt + e}, v{4 * nt + e}, v{80 + 4 * nt + e}")
        k("s_bitcmp1_b32 s36, 0")
        k(f"s_cbranch_scc1 {mode}_odd")
        for par in range(2):
            if par:
                k.label(f"{mode}_odd")
            P = 40
            for blk in range(5):
                for nt in (2 * blk - par, 2 * blk + 1 - par):
                    if 0 <= nt < 9:
                        d = P + 2 * (nt + par)
                        k(f"v_cvt_pk_bf16_f32 v{d}, v{4 * nt}, v{4 * nt + 1}")
                        k(f"v_cvt_pk_bf16_f32 v{d + 1}, v{4 * nt + 2}, v{4 * nt + 3}")
                so = ("s30", "s31", "s42")[blk >> 1]
                off = (blk & 1) * 2048
                if par == 0 and blk == 4:
                    k(f"buffer_store_dwordx2 {vr(P + 16, 2)}, v{AV0}, s[20:23], {so} offen offset:{off}{OPT['stmod']}")
                elif par == 1 and blk == 0:
                    k(f"buffer_store_dwordx2 {vr(P + 2, 2)}, v{AV0}, s[20:23], {so} offen offset:{off + 8}{OPT['stmod']}")
                else:
                    k(f"buffer_store_dwordx4 {vr(P + 4 * blk, 4)}, v{AV0}, s[20:23], {so} offen offset:{off}{OPT['stmod']}")
            if par == 0:
                k(f"s_branch {mode}_fin")
        k.label(f"{mode}_fin")
    finish(k)
    return k, NV, (256, 512, 4 * SLOT)


def main():
    out = sys.argv[1] if len(sys.argv) > 1 else f"cdna_kernels/{NAME}.s"
    for a in sys.argv[2:]:
        key, val = a.split("=")
        OPT[key] = eval(val)
    ref = open(f"cdna_kernels/{NAME}.s.ref").read().split("\n")
    head = [l for l in ref if l.startswith(";") and "@launch" not in l]
    ks = ([] if OPT["merge"] else [gen_mod()]) + [gen_row("ln1"), gen_attn(), gen_gemm("oproj"), gen_row("ln2"), gen_gemm("glu"),
          gen_gemm("down"), gen_row("fin")]
    s = "\n".join(head) + "\n"
    for k, nv, (gx, bx, lds) in ks:
        for _ in range(2 if OPT["dup"] else 1):
            s += f"; @launch kernel={k.name} grid=({gx},1,1) block=({bx},1,1) lds={lds}\n"
    s += '.amdgcn_target "amdgcn-amd-amdhsa--gfx950"\n.text\n'
    for k, nv, _ in ks:
        s += k.text()
    s += "code_end:\n    s_endpgm\n"
    s += '.section .rodata,"a"\n'
    for k, nv, _ in ks:
        s += k.desc(nv)
    open(out, "w").write(s)
    print("wrote", out, len(s), "bytes")


if __name__ == "__main__":
    main()
```

```python
import sys, struct, os

NAME = "adaLN_cond__sliding_block_cached__glu_gated_bilinear__prompt"

WS_MOD = 0x0
WS_H = 0x10000
WS_O = 0x400000
WS_PART = 0x1400000
WS_X1 = 0x2800000
WS_H2 = 0x2C00000
WS_HH = 0x3000000
WS_PART2 = 0x1E00000
WS_FLAG = 0x8000
N_FLAG = 104 * 128
WS_PROF = 0x8000000
SZ_X = 2048 * 576 * 2
SZ_PART1 = 2048 * 576 * 4

KA = dict(x=0, k=8, v=16, wq=24, wo=32, wg=48, wu=56, wd=64, c=72, wmod=80, out=88, dbg=96, ws=104)

OPT = dict(
    qscale_in_h=False,
    prof=False,
    dup=False,
    nomfma=False,
    nords=False,
    stmod=" sc1",
    gpro=2,
    gdist=3,
    apro=2,
    gwin=1.0,
    awin=1.0,
    rowst="",
    merge=True,
    pfat=2,
    halfrd=False,
    pf=True,
    mega=True,
    mw=2,
    pollmax=0,
    tk="attn6,oproj2,oproj6,glu2,glu6,down2",
    gtail=2,
    cpf=1,
)


def f2u(f):
    return struct.unpack("<I", struct.pack("<f", f))[0]


def vr(a, n=1):
    return f"v{a}" if n == 1 else f"v[{a}:{a + n - 1}]"


def sr(a, n=1):
    return f"s{a}" if n == 1 else f"s[{a}:{a + n - 1}]"


class Kern:
    def __init__(self, name):
        self.name = name
        self.L = []
        self.tail = []
        self.vm_iss = 0
        self.vm_done = 0
        self.lg_iss = 0
        self.lg_done = 0

    def __call__(self, s):
        self.L.append("    " + s)

    def label(self, l):
        self.L.append(l + ":")

    def vmem(self, s):
        self(s)
        self.vm_iss += 1
        return self.vm_iss

    def lds(self, s):
        self(s)
        self.lg_iss += 1
        return self.lg_iss

    def wait(self, vm=None, lg=None):
        parts = []
        if vm is not None and vm > self.vm_done:
            n = self.vm_iss - vm
            assert 0 <= n
            if n <= 63:
                parts.append(f"vmcnt({n})")
                self.vm_done = vm
            else:
                raise AssertionError("vmcnt overflow")
        if lg is not None and lg > self.lg_done:
            n = self.lg_iss - lg
            assert 0 <= n
            if n > 15:
                n = 15
            parts.append(f"lgkmcnt({n})")
            self.lg_done = self.lg_iss - n
        if parts:
            self("s_waitcnt " + " ".join(parts))

    def wait_all(self):
        self("s_waitcnt vmcnt(0) lgkmcnt(0)")
        self.vm_done = self.vm_iss
        self.lg_done = self.lg_iss

    def load_ptr(self, sdst, key):
        self(f"s_load_dwordx2 {sr(sdst, 2)}, s[0:1], {KA[key]}")

    def srd(self, sd, sptr, size, off=0):
        if off:
            self(f"s_add_u32 s{sd}, s{sptr}, 0x{off:x}")
            self(f"s_addc_u32 s{sd + 1}, s{sptr + 1}, 0")
        elif sd != sptr:
            self(f"s_mov_b32 s{sd}, s{sptr}")
            self(f"s_mov_b32 s{sd + 1}, s{sptr + 1}")
        self(f"s_mov_b32 s{sd + 2}, 0x{size:x}")
        self(f"s_mov_b32 s{sd + 3}, 0x00020000")

    def tick(self, i):
        ph = getattr(self, "phase", None)
        if ph is not None:
            tk = OPT["tk"].split(",") + ["fin7"]
            nm = f"{ph}{i}"
            if OPT["prof"] and nm in tk:
                j = 7 if nm == "fin7" else tk.index(nm) + 1
                self(f"s_memrealtime s[{64 + 2 * j}:{65 + 2 * j}]")
            return
        if OPT["prof"]:
            self(f"s_memrealtime s[{64 + 2 * i}:{65 + 2 * i}]")
            self(f"s_memtime s[{46 + 2 * i}:{47 + 2 * i}]")
            self.nticks = max(getattr(self, "nticks", 0), i + 1)

    def prof_store(self, kidx):
        if not OPT["prof"]:
            return
        self("s_waitcnt vmcnt(0) lgkmcnt(0)")
        self.tick(7)
        self("s_load_dwordx2 s[84:85], s[0:1], 104")
        self("s_waitcnt lgkmcnt(0)")
        self.srd(88, 84, 256 * 8 * 128, WS_PROF + kidx * 256 * 8 * 128)
        self("s_lshl_b32 s86, s2, 3")
        self("s_add_u32 s86, s86, s63")
        self("s_lshl_b32 s86, s86, 7")
        self("v_mov_b32 v0, 0")
        self("s_mov_b64 exec, 1")
        for i in range(16):
            b = 64 + 2 * i if i < 8 else 46 + 2 * (i - 8)
            self(f"v_mov_b32 v2, s{b}")
            self(f"v_mov_b32 v3, s{b + 1}")
            self(f"buffer_store_dwordx2 v[2:3], v0, s[88:91], s86 offen offset:{8 * i}")
            self("s_nop 1")
        self("s_waitcnt vmcnt(0)")

    def text(self):
        out = [f".globl {self.name}", ".p2align 8", f".type {self.name},@function", f"{self.name}:"]
        out += self.L
        out += self.tail
        return "\n".join(out) + "\n"

    def desc(self, vgpr, sgpr=100):
        acc = (vgpr + 3) // 4 * 4
        return (f".p2align 6\n.amdhsa_kernel {self.name}\n"
                f"  .amdhsa_next_free_vgpr {vgpr}\n  .amdhsa_next_free_sgpr {sgpr}\n"
                f"  .amdhsa_accum_offset {acc}\n  .amdhsa_group_segment_fixed_size 0\n"
                f"  .amdhsa_kernarg_size 112\n  .amdhsa_user_sgpr_count 2\n"
                f"  .amdhsa_user_sgpr_kernarg_segment_ptr 1\n  .amdhsa_system_sgpr_workgroup_id_x 1\n"
                f".end_amdhsa_kernel\n")


def guard(k, gx):
    k(f"s_cmp_ge_u32 s2, {gx}")
    k(f"s_cbranch_scc1 {k.name}_end")
    if OPT["prof"]:
        for i in range(8):
            k(f"s_mov_b64 s[{64 + 2 * i}:{65 + 2 * i}], 0")
            k(f"s_mov_b64 s[{46 + 2 * i}:{47 + 2 * i}], 0")
        k.tick(0)
        k("v_lshrrev_b32 v1, 6, v0")
        k("s_nop 1")
        k("v_readfirstlane_b32 s63, v1")
        k("s_waitcnt lgkmcnt(0)")


KIDX = {}


def finish(k):
    k.prof_store(KIDX.setdefault(k.name, len(KIDX)))
    k.label(f"{k.name}_end")
    k("s_endpgm")


def gen_mod():
    k = Kern("mod_kernel")
    guard(k, 54)
    k.load_ptr(4, "wmod")
    k.load_ptr(8, "c")
    k.load_ptr(16, "ws")
    k("v_and_b32 v1, 7, v0")
    k("v_lshrrev_b32 v2, 3, v0")
    k("s_lshl_b32 s3, s2, 7")
    k("s_movk_i32 s20, 6912")
    k("v_mul_lo_u32 v3, v2, s20")
    k("v_lshl_add_u32 v3, v1, 4, v3")
    k("v_add_u32 v3, s3, v3")
    k("v_lshlrev_b32 v4, 1, v2")
    k("s_waitcnt lgkmcnt(0)")
    k.srd(4, 4, 576 * 3456 * 2)
    k.srd(8, 8, 576 * 2)
    k.srd(12, 16, 3456 * 4, WS_MOD)
    W = 32
    C = 8
    cs = []
    ws = []
    for i in range(18):
        cs.append(k.vmem(f"buffer_load_ushort v{C + i}, v4, s[8:11], 0 offen offset:{i * 64}"))
    for i in range(18):
        k(f"s_mov_b32 s21, {i * 32 * 6912}")
        ws.append(k.vmem(f"buffer_load_dwordx4 {vr(W + 4 * i, 4)}, v3, s[4:7], s21 offen"))
    k.wait(vm=cs[-1])
    T = 104
    k(f"s_mov_b32 s22, 0x{f2u(-1.4426950408889634):x}")
    for i in range(18):
        k(f"v_lshlrev_b32 v{C + i}, 16, v{C + i}")
    for i in range(18):
        k(f"v_mul_f32 v{T + i}, s22, v{C + i}")
    for i in range(18):
        k(f"v_exp_f32 v{T + i}, v{T + i}")
    for i in range(18):
        k(f"v_add_f32 v{T + i}, 1.0, v{T + i}")
    for i in range(18):
        k(f"v_rcp_f32 v{T + i}, v{T + i}")
    for i in range(18):
        k(f"v_mul_f32 v{C + i}, v{C + i}, v{T + i}")
    for i in range(18):
        k(f"v_cvt_pk_bf16_f32 v{C + i}, v{C + i}, v{C + i}")
    for i in range(18):
        k(f"v_and_b32 v{C + i}, 0xffff0000, v{C + i}")
    A = 104
    U = 112
    for i in range(18):
        k.wait(vm=ws[i])
        for q in range(4):
            k(f"v_lshlrev_b32 v{U + 2 * q}, 16, v{W + 4 * i + q}")
            k(f"v_and_b32 v{U + 2 * q + 1}, 0xffff0000, v{W + 4 * i + q}")
        for e in range(8):
            if i == 0:
                k(f"v_mul_f32 v{A + e}, v{C + i}, v{U + e}")
            else:
                k(f"v_fmac_f32 v{A + e}, v{C + i}, v{U + e}")
    k("v_lshlrev_b32 v5, 5, v0")
    k.lds(f"ds_write_b128 v5, {vr(A, 4)}")
    k.lds(f"ds_write_b128 v5, {vr(A + 4, 4)} offset:16")
    k("s_waitcnt lgkmcnt(0)")
    k("s_barrier")
    k("v_cmp_gt_u32 vcc, 64, v0")
    k("s_and_saveexec_b64 s[24:25], vcc")
    k(f"s_cbranch_execz {k.name}_end")
    k("v_lshlrev_b32 v5, 2, v0")
    for r in range(32):
        k(f"ds_read_b32 v{W + r}, v5 offset:{r * 256}")
    k("s_waitcnt lgkmcnt(0)")
    n = 32
    while n > 1:
        n //= 2
        for r in range(n):
            k(f"v_add_f32 v{W + r}, v{W + r}, v{W + r + n}")
    k(f"v_cvt_pk_bf16_f32 v{W}, v{W}, v{W}")
    k(f"v_and_b32 v{W}, 0xffff0000, v{W}")
    k("s_mov_b32 s26, 0")
    k("s_sub_u32 s27, s2, 9")
    k("s_cmp_lt_u32 s27, 9")
    k("s_cselect_b32 s26, 1.0, s26")
    k("s_sub_u32 s27, s2, 36")
    k("s_cmp_lt_u32 s27, 9")
    k("s_cselect_b32 s26, 1.0, s26")
    k(f"v_add_f32 v{W}, s26, v{W}")
    k(f"v_cvt_pk_bf16_f32 v{W}, v{W}, v{W}")
    k(f"v_and_b32 v{W}, 0xffff0000, v{W}")
    k("s_lshl_b32 s3, s2, 8")
    k(f"buffer_store_dword v{W}, v5, s[12:15], s3 offen")
    finish(k)
    return k, 128, (54, 256, 8192)


def dpp_sum16(k, v, t):
    for mod in ("quad_perm:[1,0,3,2]", "quad_perm:[2,3,0,1]", "row_half_mirror", "row_mirror"):
        k("s_nop 1")
        k(f"v_add_f32_dpp v{v}, v{v}, v{v} {mod} row_mask:0xf bank_mask:0xf")


def wave_sum8(k, v, t):
    k("s_nop 1")
    k(f"v_add_f32_dpp v{v}, v{v}, v{v} row_ror:8 row_mask:0xf bank_mask:0xf")
    for sw in ("v_permlane16_swap_b32", "v_permlane32_swap_b32"):
        k(f"v_mov_b32 v{t}, v{v}")
        k("s_nop 1")
        k(f"{sw} v{v}, v{t}")
        k("s_nop 1")
        k(f"v_add_f32 v{v}, v{v}, v{t}")


NSPLIT = 4


def gen_row(mode):
    k = Kern(f"{mode}_kernel")
    guard(k, 256)
    k.load_ptr(4, "x")
    k.load_ptr(6, "ws")
    k.load_ptr(28, "out")
    if mode == "ln1":
        k.load_ptr(36, "dbg")
        k.load_ptr(40, "wmod")
        k.load_ptr(44, "c")
        k.load_ptr(80, "wq")
        k.load_ptr(84, "k")
        k.load_ptr(86, "v")
        k("v_lshrrev_b32 v1, 6, v0")
        k("s_nop 0")
        k("v_readfirstlane_b32 s89, v1")
    perm = mode != "ln1"
    M, CH, AL, RM, PA, LW = 1, 2, 3, 4, 5, 6
    k(f"v_and_b32 v{M}, 7, v0")
    k(f"v_lshrrev_b32 v{CH}, 3, v0")
    k(f"v_lshlrev_b32 v{AL}, 4, v{M}")
    k(f"v_lshl_add_u32 v{AL}, v{CH}, 9, v{AL}")
    if perm:
        k(f"v_lshrrev_b32 v7, 2, v{CH}")
        k(f"v_and_b32 v{PA}, 3, v{CH}")
        k(f"v_lshlrev_b32 v{PA}, 4, v{PA}")
        k(f"v_lshl_add_u32 v{PA}, v7, 7, v{PA}")
    else:
        k(f"v_lshlrev_b32 v{PA}, 5, v{CH}")
    hi4 = 64 if perm else 16
    k(f"v_mul_u32_u24 v{RM}, 1152, v{M}")
    k(f"v_lshrrev_b32 v7, 1, v{PA}")
    k(f"v_add_u32 v{RM}, v{RM}, v7")
    k("s_lshr_b32 s30, s2, 2")
    k("s_mul_i32 s30, s30, 36864")
    k("s_and_b32 s31, s2, 3")
    k("s_lshl_b32 s31, s31, 7")
    k("s_add_u32 s30, s30, s31")
    k("s_mul_i32 s31, s2, 9216")
    k("s_waitcnt lgkmcnt(0)")
    k.srd(8, 4, SZ_X)
    k.srd(12, 6, 3456 * 4, WS_MOD)
    k.srd(16, 6, NSPLIT * SZ_X, WS_PART)
    k.srd(24, 6, SZ_X, WS_X1)
    if mode == "fin":
        k.srd(20, 28, SZ_X)
    else:
        k.srd(20, 6, SZ_X, WS_H if mode == "ln1" else WS_H2)
    X = 8
    P = 12
    G = P + 4 * NSPLIT
    SH = G + 8
    SC = SH + 8
    V = SC + 8
    U = V + 8
    NV = U + 20

    merge = mode == "ln1" and OPT["merge"]

    def ldparam(dst, chunk):
        sc = " sc1" if merge else ""
        k(f"s_movk_i32 s33, {chunk * 2304}")
        k.vmem(f"buffer_load_dwordx4 {vr(dst, 4)}, v{PA}, s[12:15], s33 offen{sc}")
        return k.vmem(f"buffer_load_dwordx4 {vr(dst + 4, 4)}, v{PA}, s[12:15], s33 offen offset:{hi4}{sc}")

    def unpack(dst, src):
        for i in range(4):
            k(f"v_lshlrev_b32 v{dst + 2 * i}, 16, v{src + i}")
            k(f"v_and_b32 v{dst + 2 * i + 1}, 0xffff0000, v{src + i}")

    if merge:
        k.srd(36, 36, 256)
        k("s_cmp_lt_u32 s2, 54")
        k("s_cbranch_scc1 ln1_mod")
        k.label("ln1_main")
        mod_part(k, P)
        xw = k.vmem(f"buffer_load_dwordx4 {vr(X, 4)}, v{RM}, s[8:11], s31 offen")
        if OPT["mega"]:
            k.srd(16, 6, N_FLAG, WS_FLAG)
            k(f"v_lshrrev_b32 v{U}, 5, v0")
            k(f"v_lshlrev_b32 v{U}, 16, v{U}")
            k(f"v_lshl_add_u32 v{U}, v0, 2, v{U}")
            k("s_lshl_b32 s33, s2, 7")
            k(f"v_add_u32 v{U}, s33, v{U}")
            k(f"v_mov_b32 v{U + 1}, 0")
            k.vmem(f"buffer_store_dword v{U + 1}, v{U}, s[16:19], 0 offen")
        pfi = row_prefetch(k, mode, U + 16)
        k.wait(vm=xw)
        pfi()
        unpack(V, X)
    elif mode == "ln1":
        xw = k.vmem(f"buffer_load_dwordx4 {vr(X, 4)}, v{RM}, s[8:11], s31 offen")
        ldparam(SH, 0)
        cw = ldparam(SC, 1)
        row_prefetch(k, mode, U + 16)()
        k.wait(vm=xw)
        unpack(V, X)
    else:
        pw = []
        for s in range(NSPLIT):
            k(f"s_add_u32 s32, s30, {s * SZ_X}")
            pw.append(k.vmem(f"buffer_load_dwordx4 {vr(P + 4 * s, 4)}, v{AL}, s[16:19], s32 offen"))
        if mode == "ln2":
            k.vmem(f"buffer_load_dwordx2 {vr(X, 2)}, v{RM}, s[8:11], s31 offen")
            k.vmem(f"buffer_load_dwordx2 {vr(X + 2, 2)}, v{RM}, s[8:11], s31 offen offset:32")
        else:
            k.vmem(f"buffer_load_dwordx4 {vr(X, 4)}, v{AL}, s[24:27], s30 offen")
        gw = ldparam(G, 2 if mode == "ln2" else 5)
        if mode == "ln2":
            ldparam(SH, 3)
            cw = ldparam(SC, 4)
        k.wait(vm=pw[0])
        unpack(V, P)
        for s in range(1, NSPLIT):
            k.wait(vm=pw[s])
            unpack(U, P + 4 * s)
            for e in range(8):
                k(f"v_add_f32 v{V + e}, v{V + e}, v{U + e}")
        k.wait(vm=gw)
        unpack(U, X)
        for e in range(8):
            k(f"v_fma_f32 v{V + e}, v{V + e}, v{G + e}, v{U + e}")
        for i in range(4):
            k(f"v_cvt_pk_bf16_f32 v{X + i}, v{V + 2 * i}, v{V + 2 * i + 1}")
        if mode == "fin":
            k.vmem(f"buffer_store_dwordx2 {vr(X, 2)}, v{RM}, s[20:23], s31 offen")
            k.vmem(f"buffer_store_dwordx2 {vr(X + 2, 2)}, v{RM}, s[20:23], s31 offen offset:32")
            finish(k)
            return k, NV, (256, 576, 0)
        k.vmem(f"buffer_store_dwordx4 {vr(X, 4)}, v{AL}, s[24:27], s30 offen{OPT['rowst']}")
        unpack(V, X)
    A, B, T = G, G + 1, G + 2
    k(f"v_add_f32 v{A}, v{V}, v{V + 1}")
    k(f"v_add_f32 v{T}, v{V + 2}, v{V + 3}")
    k(f"v_add_f32 v{T + 1}, v{V + 4}, v{V + 5}")
    k(f"v_add_f32 v{T + 2}, v{V + 6}, v{V + 7}")
    k(f"v_add_f32 v{A}, v{A}, v{T}")
    k(f"v_add_f32 v{T + 1}, v{T + 1}, v{T + 2}")
    k(f"v_add_f32 v{A}, v{A}, v{T + 1}")
    wave_sum8(k, A, T)
    k(f"v_mul_f32 v{A}, 0x{f2u(1.0 / 64):x}, v{A}")
    for e in range(8):
        k(f"v_sub_f32 v{U + e}, v{V + e}, v{A}")
    k(f"v_mul_f32 v{B}, v{U}, v{U}")
    k(f"v_mul_f32 v{T}, v{U + 1}, v{U + 1}")
    for e in range(2, 8):
        k(f"v_fmac_f32 v{(B, T)[e & 1]}, v{U + e}, v{U + e}")
    k(f"v_add_f32 v{B}, v{B}, v{T}")
    wave_sum8(k, B, T)
    k(f"v_mul_u32_u24 v{LW}, 80, v{M}")
    k("v_lshrrev_b32 v7, 6, v0")
    k(f"v_lshl_add_u32 v7, v7, 3, v{LW}")
    k(f"ds_write_b64 v7, {vr(A, 2)}")
    if merge:
        k("s_cmp_lg_u32 s89, 0")
        k("s_cbranch_scc1 ln1_go")
        k(f"v_mov_b32 v{U}, 0")
        k.label("ln1_poll")
        k(f"buffer_load_dword v{U + 1}, v{U}, s[36:39], 0 offen sc1")
        k("s_waitcnt vmcnt(0)")
        k(f"v_readfirstlane_b32 s40, v{U + 1}")
        k("s_cmp_lt_u32 s40, 18")
        k("s_cbranch_scc1 ln1_poll")
        k.label("ln1_go")
    k("s_waitcnt lgkmcnt(0)")
    k("s_barrier")
    if merge:
        ldparam(SH, 0)
        cw = ldparam(SC, 1)
    for i in range(4):
        k(f"ds_read_b128 {vr(U + 4 * i, 4)}, v{LW} offset:{16 * i}")
    k(f"ds_read_b64 {vr(A, 2)}, v{LW} offset:64")
    k("s_waitcnt lgkmcnt(0)")
    mu = [U + 2 * i for i in range(8)] + [A]
    m2 = [U + 2 * i + 1 for i in range(8)] + [B]
    MEAN, VAR = T, T + 1
    k(f"v_add_f32 v{MEAN}, v{mu[0]}, v{mu[1]}")
    k(f"v_add_f32 v{VAR}, v{m2[0]}, v{m2[1]}")
    for i in range(2, 9):
        k(f"v_add_f32 v{MEAN}, v{MEAN}, v{mu[i]}")
        k(f"v_add_f32 v{VAR}, v{VAR}, v{m2[i]}")
    k(f"v_mul_f32 v{MEAN}, 0x{f2u(1.0 / 9):x}, v{MEAN}")
    k(f"v_mul_f32 v{VAR}, 0x{f2u(1.0 / 64):x}, v{VAR}")
    for i in range(9):
        k(f"v_sub_f32 v{mu[i]}, v{mu[i]}, v{MEAN}")
    for i in range(9):
        k(f"v_fmac_f32 v{VAR}, v{mu[i]}, v{mu[i]}")
    k(f"v_mov_b32 v{T + 2}, 0x{f2u(1e-5):x}")
    k(f"v_fmac_f32 v{T + 2}, 0x{f2u(1.0 / 9):x}, v{VAR}")
    k(f"v_rsq_f32 v{T + 2}, v{T + 2}")
    for e in range(8):
        k(f"v_sub_f32 v{V + e}, v{V + e}, v{MEAN}")
    for e in range(8):
        k(f"v_mul_f32 v{V + e}, v{V + e}, v{T + 2}")
    k.wait(vm=cw)
    for e in range(8):
        k(f"v_fma_f32 v{V + e}, v{V + e}, v{SC + e}, v{SH + e}")
    if mode == "ln1" and OPT["qscale_in_h"]:
        for e in range(8):
            k(f"v_mul_f32 v{V + e}, 0x{f2u(QSCALE):x}, v{V + e}")
    for i in range(4):
        k(f"v_cvt_pk_bf16_f32 v{P + i}, v{V + 2 * i}, v{V + 2 * i + 1}")
    k.vmem(f"buffer_store_dwordx4 {vr(P, 4)}, v{AL}, s[20:23], s30 offen{OPT['rowst']}")
    k("s_waitcnt vmcnt(0)")
    finish(k)
    return k, NV, (256, 576, 4096)


def code_pf(k, first, last, VA):
    k("s_getpc_b64 s[96:97]")
    k.label(f"{k.name}_pc")
    k(f"s_add_u32 s96, s96, {first}-{k.name}_pc")
    k("s_addc_u32 s97, s97, 0")
    k(f"s_mov_b32 s98, {last}-{first}")
    k("s_lshr_b32 s99, s2, 3")
    k("s_lshl_b32 s99, s99, 12")
    k(f"v_and_b32 v{VA}, 31, v0")
    k(f"v_lshlrev_b32 v{VA}, 7, v{VA}")
    k(f"v_add_u32 v{VA}, s99, v{VA}")
    k("s_mov_b32 s99, 0x00020000")
    return f"buffer_load_dword v{VA}, v{VA}, s[96:99], 0 offen"


def row_prefetch(k, mode, T):
    if not OPT["pf"]:
        return lambda: None
    k("s_lshr_b32 s88, s2, 3")
    k("s_bfe_u32 s90, s2, 0x20001")
    k("s_mul_i32 s91, s88, 288")
    k(f"v_subrev_u32 v{T}, 64, v0")
    k(f"v_min_u32 v{T}, 287, v{T}")
    k(f"v_add_u32 v{T}, s91, v{T}")
    k(f"v_lshrrev_b32 v{T + 1}, 4, v{T}")
    k(f"v_and_b32 v{T}, 15, v{T}")
    k(f"v_lshlrev_b32 v{T}, 7, v{T}")
    k(f"v_lshl_add_u32 v{T}, v{T + 1}, 13, v{T}")
    k("s_lshl_b32 s91, s90, 11")
    k(f"v_and_b32 v{T + 1}, 127, v0")
    k(f"v_lshlrev_b32 v{T + 1}, 7, v{T + 1}")
    k("s_lshr_b32 s92, s88, 3")
    k("s_lshl_b32 s93, s90, 2")
    k("s_add_u32 s92, s92, s93")
    k("s_lshl_b32 s92, s92, 19")
    k("s_and_b32 s93, s88, 7")
    k("s_cmp_ge_u32 s89, 8")
    k("s_cselect_b32 s94, 13, 14")
    k("s_cselect_b32 s84, s86, s84")
    k("s_cselect_b32 s85, s87, s85")
    k("s_lshl_b32 s93, s93, s94")
    k("s_add_u32 s92, s92, s93")
    k(f"s_add_u32 s92, s92, {1536 * 256}")
    k("s_cmp_ge_u32 s89, 6")
    k("s_cselect_b64 vcc, -1, 0")
    k("s_cselect_b32 s91, s92, s91")
    k(f"v_cndmask_b32 v{T}, v{T}, v{T + 1}, vcc")
    k(f"s_mov_b32 s82, {576 * 4096 * 2}")
    k(f"s_cselect_b32 s82, {16 * 2048 * 256}, s82")
    k("s_cselect_b32 s80, s84, s80")
    k("s_cselect_b32 s81, s85, s81")
    k("s_mov_b32 s83, 0x00020000")
    cop = code_pf(k, "main_kernel" if OPT["mega"] else "attn_kernel", "code_end", T + 2) if OPT["cpf"] else None

    def issue():
        k("s_cmp_eq_u32 s89, 0")
        k("s_cbranch_scc1 ln1_nopf")
        if cop:
            k(cop)
        k(f"buffer_load_dword v{T + 3}, v{T}, s[80:83], s91 offen")
        k.label("ln1_nopf")
    return issue


def mod_part(main, R):
    k = Kern("tmp")
    k.label("ln1_mod")
    C, W, A, U = R, R + 8, R + 40, R + 48
    k.srd(40, 40, 576 * 3456 * 2)
    k.srd(44, 44, 576 * 2)
    k(f"v_mul_u32_u24 v{U}, 6912, v2")
    k(f"v_lshl_add_u32 v{U}, v1, 4, v{U}")
    k(f"v_lshlrev_b32 v{U + 1}, 1, v2")
    k("s_lshl_b32 s3, s2, 7")
    cs, ws = [], []
    for i in range(8):
        cs.append(k.vmem(f"buffer_load_ushort v{C + i}, v{U + 1}, s[44:47], 0 offen offset:{i * 144}"))
    for i in range(8):
        k(f"s_add_u32 s33, s3, {i * 72 * 6912}")
        ws.append(k.vmem(f"buffer_load_dwordx4 {vr(W + 4 * i, 4)}, v{U}, s[40:43], s33 offen"))
    k.wait(vm=cs[-1])
    T = A
    for ins in (f"v_lshlrev_b32 v{{c}}, 16, v{{c}}", f"v_mul_f32 v{{t}}, 0x{f2u(-1.4426950408889634):x}, v{{c}}",
                "v_exp_f32 v{t}, v{t}", "v_add_f32 v{t}, 1.0, v{t}", "v_rcp_f32 v{t}, v{t}",
                "v_mul_f32 v{c}, v{c}, v{t}", "v_cvt_pk_bf16_f32 v{c}, v{c}, v{c}", "v_and_b32 v{c}, 0xffff0000, v{c}"):
        for i in range(8):
            k(ins.format(c=C + i, t=T + i))
    for i in range(8):
        k.wait(vm=ws[i])
        for q in range(4):
            k(f"v_lshlrev_b32 v{U + 2 * q}, 16, v{W + 4 * i + q}")
            k(f"v_and_b32 v{U + 2 * q + 1}, 0xffff0000, v{W + 4 * i + q}")
        for e in range(8):
            k(f"v_mul_f32 v{A + e}, v{C + i}, v{U + e}" if i == 0 else f"v_fmac_f32 v{A + e}, v{C + i}, v{U + e}")
    for e in range(8):
        k(f"v_add_f32_dpp v{A + e}, v{A + e}, v{A + e} row_ror:8 row_mask:0xf bank_mask:0xf")
    for sw in ("v_permlane16_swap_b32", "v_permlane32_swap_b32"):
        for e in range(8):
            k(f"v_mov_b32 v{U + e}, v{A + e}")
        for e in range(8):
            k(f"{sw} v{A + e}, v{U + e}")
        for e in range(8):
            k(f"v_add_f32 v{A + e}, v{A + e}, v{U + e}")
    k("s_lshl_b32 s33, s89, 8")
    k(f"v_lshlrev_b32 v{U}, 5, v1")
    k(f"v_add_u32 v{U}, s33, v{U}")
    k(f"ds_write_b128 v{U}, {vr(A, 4)} offset:1024")
    k(f"ds_write_b128 v{U}, {vr(A + 4, 4)} offset:1040")
    k("s_waitcnt lgkmcnt(0)")
    k("s_barrier")
    k("s_cmp_lg_u32 s89, 0")
    k("s_cbranch_scc1 ln1_main")
    k(f"v_lshlrev_b32 v{U}, 2, v0")
    for r in range(9):
        k(f"ds_read_b32 v{W + r}, v{U} offset:{1024 + r * 256}")
    k("s_mov_b32 s33, 0")
    k("s_sub_u32 s3, s2, 9")
    k("s_cmp_lt_u32 s3, 9")
    k("s_cselect_b32 s33, 1.0, s33")
    k("s_sub_u32 s3, s2, 36")
    k("s_cmp_lt_u32 s3, 9")
    k("s_cselect_b32 s33, 1.0, s33")
    k("s_lshl_b32 s3, s2, 8")
    k("s_waitcnt lgkmcnt(0)")
    for a, b in ((0, 1), (2, 3), (4, 5), (6, 7), (0, 2), (4, 6), (0, 8), (0, 4)):
        k(f"v_add_f32 v{W + a}, v{W + a}, v{W + b}")
    k(f"v_cvt_pk_bf16_f32 v{W}, v{W}, v{W}")
    k(f"v_and_b32 v{W}, 0xffff0000, v{W}")
    k(f"v_add_f32 v{W}, s33, v{W}")
    k(f"v_cvt_pk_bf16_f32 v{W}, v{W}, v{W}")
    k(f"v_and_b32 v{W}, 0xffff0000, v{W}")
    k(f"buffer_store_dword v{W}, v{U}, s[12:15], s3 offen sc1")
    k("s_cmp_ge_u32 s2, 18")
    k("s_cbranch_scc1 ln1_main")
    k(f"v_mov_b32 v{U + 1}, 1")
    k("s_waitcnt vmcnt(0)")
    k("s_mov_b64 exec, 1")
    k(f"buffer_atomic_add v{U + 1}, v{U}, s[36:39], 0 offen sc1")
    k("s_mov_b64 exec, -1")
    k("s_branch ln1_main")
    main.tail += k.L


QSCALE = (128 ** -0.5) * 1.4426950408889634


class Step:
    def __init__(self, group, reads, mfma, pre_read=None, pre=None):
        self.group = group
        self.reads = reads
        self.mfma = mfma
        self.pre = pre or []
        self.valu = []
        self.slots = []


def run_stream(k, steps, FR, NFR, LOOK, group_cover, on_sync, dma_per_step=1, queue0=None, lgbar=False, win=0.0):
    synced = set()
    queue = list(queue0 or [])
    rseq = {}
    N = len(steps)
    k.slot_last_read = {}
    for n in range(-LOOK, N):
        m = n + LOOK
        if m < N:
            st = steps[m]
            if st.group not in synced:
                while queue and group_cover.get(st.group) is None:
                    queue.pop(0)()
                assert group_cover.get(st.group) is not None, st.group
                k.wait(vm=group_cover[st.group], lg=k.lg_iss if lgbar else None)
                k("s_barrier")
                if st.group in getattr(k, "tick_groups", {}):
                    k.tick(k.tick_groups[st.group])
                synced.add(st.group)
                queue += on_sync(st.group, n)
                nx = m
                while nx < N and steps[nx].group == st.group:
                    nx += 1
                span = max(1.0, (nx - m) * win)
                rate = max(len(queue) / span, 1e-9)
                credit = 1.0
            dst = FR + 4 * (m % NFR)
            last = None
            for ins in st.reads(dst):
                if ins.startswith("ds_") and (OPT["nords"] or (OPT["halfrd"] and k.name == "glu_kernel" and m % 2)):
                    last = k.lg_iss
                elif ins.startswith("ds_"):
                    last = k.lds(ins)
                else:
                    k(ins)
            rseq[m] = last
            for s in st.slots:
                k.slot_last_read[s] = last
        if n >= 0:
            st = steps[n]
            k.wait(lg=rseq[n])
            for p in st.pre:
                if callable(p):
                    p()
                else:
                    k(p)
            for ins in st.mfma(FR + 4 * (n % NFR)):
                if not OPT["nomfma"]:
                    k(ins)
            k.cur_step = n
            if win:
                while queue and credit >= 1.0 - 1e-9:
                    queue.pop(0)()
                    credit -= 1.0
                credit += rate
            else:
                for _ in range(dma_per_step):
                    if queue:
                        queue.pop(0)()
            for p in st.valu:
                if callable(p):
                    p()
                else:
                    k(p)
    assert not queue


def spread(steps, first, last, items):
    total = sum(c for _, c in items)
    n = last - first + 1
    acc = 0.0
    for ins, c in items:
        idx = first + min(n - 1, int((acc + c * 0.5) * n / total))
        steps[idx].valu.append(ins)
        acc += c


def pf_setup(k, keys, size, per_wg, lpr, rstride, xoff, VP, T, code, wave="s24"):
    per_wave = (per_wg + 7) // 8
    assert per_wave <= 64
    for j, key in enumerate(keys):
        k.load_ptr(80 + 4 * j, key)
    k(f"v_and_b32 v{VP}, 63, v0")
    k(f"v_min_u32 v{VP}, {per_wave - 1}, v{VP}")
    k("s_lshr_b32 s88, s2, 3")
    k(f"s_mul_i32 s88, s88, {per_wg}")
    k(f"s_mul_i32 s89, {wave}, {per_wave}")
    k("s_add_u32 s88, s88, s89")
    k(f"v_add_u32 v{VP}, s88, v{VP}")
    k(f"v_min_u32 v{VP}, {32 * per_wg - 1}, v{VP}")
    if lpr:
        mul = (65536 + lpr - 1) // lpr
        assert all((i * mul) >> 16 == i // lpr for i in range(32 * per_wg))
        k(f"v_mul_u32_u24 v{T}, {mul}, v{VP}")
        k(f"v_lshrrev_b32 v{T}, 16, v{T}")
        k(f"v_mul_u32_u24 v{T}, {rstride // 128 - lpr}, v{T}")
        k(f"v_add_u32 v{VP}, v{VP}, v{T}")
    k(f"v_lshlrev_b32 v{VP}, 7, v{VP}")
    k("s_bfe_u32 s88, s2, 0x20001")
    k(f"s_mul_i32 s88, s88, {xoff}")
    k(f"v_add_u32 v{VP}, s88, v{VP}")
    cop = code_pf(k, code[0], code[1], VP + 1 + len(keys)) if OPT["cpf"] >= 2 else None

    def after_wait():
        for j in range(len(keys)):
            k.srd(80 + 4 * j, 80 + 4 * j, size)

    def ops():
        return [lambda j=j: k.vmem(f"buffer_load_dword v{VP + 1 + j}, v{VP}, s[{80 + 4 * j}:{83 + 4 * j}], 0 offen")
                for j in range(len(keys))] + ([lambda: k.vmem(cop)] if cop else [])
    return after_wait, ops


def gen_attn(k=None):
    mega = k is not None
    k = k or Kern("attn_kernel")
    O, NEGM, SA, SB, QF, FR = 0, 64, 80, 112, 144, 176
    KAD, VAD, WAD = 208, 216, 220
    L0, L1, MX0, MX1, ALPHA, TMP = 224, 225, 226, 227, 228, 229
    DK0, DK1, DV, DW0, DW1, LIN = 230, 231, 232, 233, 234, 235
    NV = 236
    SLOT = 16384
    NSLOT = 10
    if not mega:
        guard(k, 256)
    k.load_ptr(4, "wq")
    k.load_ptr(8, "k")
    k.load_ptr(12, "v")
    k.load_ptr(32, "ws")
    T = FR
    k(f"v_lshrrev_b32 v{T}, 6, v0")
    k(f"v_and_b32 v{T + 1}, 63, v0")
    k(f"v_readfirstlane_b32 s24, v{T}")
    ln = T + 1
    k("s_and_b32 s34, s2, 6")
    k("s_lshl_b32 s34, s34, 2")
    k("s_bfe_u32 s35, s2, 0x30003")
    k("s_add_u32 s34, s34, s35")
    k("s_and_b32 s35, s2, 1")
    k("s_lshl_b32 s35, s35, 2")
    k("s_lshr_b32 s36, s2, 6")
    k("s_add_u32 s35, s35, s36")
    k("s_lshl_b32 s35, s35, 3")
    k("s_add_u32 s35, s35, s24")
    k("s_lshl_b32 s25, s24, 11")
    k("s_mul_i32 s26, s35, 36864")
    k("s_lshr_b32 s27, s34, 1")
    k("s_lshl_b32 s27, s27, 19")
    k(f"s_add_u32 s27, s27, {1536 * 256}")
    k("s_lshl_b32 s28, s35, 18")
    k("s_lshl_b32 s36, s34, 13")
    k("s_add_u32 s28, s28, s36")
    k("s_mov_b32 s29, 0")
    G4, P16, R8 = T + 2, T + 3, T + 4
    k(f"v_lshrrev_b32 v{G4}, 4, v{ln}")
    k(f"v_and_b32 v{P16}, 15, v{ln}")
    k(f"v_lshlrev_b32 v{LIN}, 4, v{ln}")
    k("s_lshl_b32 s36, s24, 3")
    k(f"v_add_u32 v{R8}, s36, v{G4}")
    a, b = T + 5, T + 6
    k(f"v_lshlrev_b32 v{a}, 2, v{G4}")
    k(f"v_xor_b32 v{a}, v{a}, v{P16}")
    k(f"v_lshlrev_b32 v{a}, 4, v{a}")
    k(f"v_lshl_add_u32 v{DV}, v{R8}, 8, v{a}")
    k(f"v_lshl_add_u32 v{DW0}, v{R8}, 13, v{a}")
    k("s_lshl_b32 s36, s34, 8")
    k(f"v_add_u32 v{DW0}, s36, v{DW0}")
    k(f"v_add_u32 v{DW1}, {32768 - 1024}, v{DW0}")
    k(f"v_and_b32 v{a}, 15, v{R8}")
    k(f"v_xor_b32 v{a}, v{a}, v{P16}")
    k(f"v_lshlrev_b32 v{a}, 4, v{a}")
    k(f"v_lshl_add_u32 v{DK0}, v{R8}, 8, v{a}")
    k(f"v_xor_b32 v{DK1}, 64, v{DK0}")
    HF = T + 7
    k(f"v_lshrrev_b32 v{HF}, 5, v{ln}")
    k(f"v_xor_b32 v{a}, v{HF}, v{P16}")
    k(f"v_lshlrev_b32 v{a}, 4, v{a}")
    k(f"v_and_b32 v{b}, 31, v{ln}")
    k(f"v_lshl_add_u32 v{KAD}, v{b}, 8, v{a}")
    for s in range(1, 8):
        k(f"v_xor_b32 v{KAD + s}, {s << 5}, v{KAD}")
    R, C, DS = T + 8, T + 9, T + 10
    k(f"v_bfe_u32 v{R}, v{ln}, 2, 2")
    k(f"v_and_b32 v{C}, 3, v{ln}")
    k(f"v_bfe_u32 v{DS}, v{ln}, 4, 1")
    k(f"v_mul_u32_u24 v{a}, {256 + 64}, v{R}")
    k(f"v_lshl_add_u32 v{a}, v{DS}, 5, v{a}")
    k(f"v_lshl_add_u32 v{VAD}, v{HF}, 10, v{a}")
    k(f"v_lshl_add_u32 v{VAD}, v{C}, 3, v{VAD}")
    k(f"v_lshl_add_u32 v{WAD}, v{HF}, 11, v{a}")
    k(f"v_and_b32 v{b}, 1, v{C}")
    k(f"v_lshl_add_u32 v{WAD}, v{b}, 4, v{WAD}")
    k(f"v_lshrrev_b32 v{b}, 1, v{C}")
    k(f"v_lshl_add_u32 v{WAD}, v{b}, 3, v{WAD}")
    for t in range(1, 4):
        k(f"v_xor_b32 v{VAD + t}, {t << 6}, v{VAD}")
        k(f"v_xor_b32 v{WAD + t}, {t << 6}, v{WAD}")
    k(f"v_mov_b32 v{L0}, 0")
    k(f"v_mov_b32 v{L1}, 0")
    pfw, pfops = pf_setup(k, ["wo"], 4096 * 576 * 2, 288, 0, 0, 1024 * 1152, NV, T, ("oproj_kernel", "glu_kernel"))
    NV += 3
    k("s_waitcnt lgkmcnt(0)")
    pfw()
    k.srd(4, 4, 576 * 4096 * 2)
    k.srd(8, 8, 16 * 2048 * 128 * 2)
    k.srd(12, 12, 16 * 2048 * 128 * 2)
    k.srd(16, 32, SZ_X, WS_H)
    k.srd(20, 32, 2048 * 4096 * 2, WS_O)

    slots = [("W", s) for s in range(9)] + [("K", 0), ("K", 1)]
    for i in range(6):
        slots += [("V", i), ("K", i + 2)]
    slots += [("V", 6), ("V", 7)]
    sidx = {s: i for i, s in enumerate(slots)}
    groups = [[i] for i in range(9)] + [[9 + 2 * g, 10 + 2 * g] for g in range(8)]
    gof = {}
    for g, ss in enumerate(groups):
        for s in ss:
            gof[s] = g
    cover = {}
    h_last_use = {}

    def issue_ops(g):
        ops = []
        for idx in groups[g]:
            kind, c = slots[idx]
            pos = idx % NSLOT

            def mk(kind=kind, c=c, pos=pos, u=0, idx=idx):
                def f():
                    k(f"s_add_u32 m0, s25, {pos * SLOT}")
                    if kind == "W":
                        k(f"s_mov_b32 s30, {c * 64 * 8192}")
                        va, srd = (DW0, DW1)[u], "s[4:7]"
                    else:
                        k(f"s_add_u32 s30, s27, {c * 16384}")
                        if kind == "K":
                            va, srd = (DK0, DK1)[u], "s[8:11]"
                        else:
                            va, srd = DV, "s[12:15]"
                    off = " offset:1024" if u else ""
                    return k.vmem(f"buffer_load_dwordx4 v{va}, {srd}, s30 offen{off} lds")
                return f
            ops.append(mk(u=0))
            ops.append(mk(u=1))
            if kind == "W":
                for ks in range(4):
                    def fh(c=c, ks=ks):
                        if c >= 5:
                            assert k.cur_step >= h_last_use[c - 5], (c, k.cur_step)
                        k(f"s_add_u32 s31, s26, {c * 4096}")
                        return k.vmem(f"buffer_load_dwordx4 {vr(16 * (c % 5) + 4 * ks, 4)}, v{LIN}, s[16:19], s31 offen offset:{ks * 1024}")
                    ops.append(fh)
        last = ops[-1]

        def fin():
            cover[g] = last()
        return ops[:-1] + [fin]

    def on_sync(g, n):
        tgt = g + 3
        if g < 2 or tgt >= len(groups):
            return []
        for idx in groups[tgt]:
            old = idx - NSLOT
            if old >= 0:
                assert old in k.slot_last_read and k.slot_last_read[old] <= k.lg_done, (g, idx)
                assert all(old not in st.slots for st in steps[max(0, n + LOOK):]), (g, idx)
        return issue_ops(tgt) + (pfops() if OPT["pf"] and tgt == len(groups) - 1 else [])

    bias = {"K": 0, "V": 0, "W": 0}
    setregs = {"K": (KAD, 8), "V": (VAD, 4), "W": (WAD, 4)}

    def fix_bias(kind, base):
        out = []
        if not (bias[kind] <= base and base + SLOT <= bias[kind] + 65536):
            d = base - bias[kind]
            r0, n = setregs[kind]
            for i in range(n):
                if d > 0:
                    out.append(f"v_add_u32 v{r0 + i}, {d}, v{r0 + i}")
                else:
                    out.append(f"v_subrev_u32 v{r0 + i}, {-d}, v{r0 + i}")
            bias[kind] = base
        return out

    def tr_reads(kind, idx, t, row0, estep):
        def f(dst):
            base = (idx % NSLOT) * SLOT
            out = fix_bias(kind, base)
            r0 = setregs[kind][0]
            for e in range(2):
                off = base - bias[kind] + (row0 + estep * e) * 256
                out.append(f"ds_read_b64_tr_b16 {vr(dst + 2 * e, 2)}, v{r0 + t} offset:{off}")
            return out
        return f

    def k_reads(idx, j, s):
        def f(dst):
            base = (idx % NSLOT) * SLOT
            out = fix_bias("K", base)
            off = base - bias["K"] + j * 8192
            out.append(f"ds_read_b128 {vr(dst, 4)}, v{KAD + s} offset:{off}")
            return out
        return f

    MF = "v_mfma_f32_32x32x16_bf16"
    steps = []
    LOOK = 6
    for s in range(9):
        idx = sidx[("W", s)]
        for ks in range(4):
            for t in range(4):
                d = vr(SA + 16 * t, 16)
                c = "0" if (s == 0 and ks == 0) else d
                hb = vr(16 * (s % 5) + 4 * ks, 4)
                st = Step(gof[idx], tr_reads("W", idx, t, 16 * ks, 4),
                          lambda fr, d=d, c=c, hb=hb: [f"{MF} {d}, {vr(fr, 4)}, {hb}, {c}"])
                st.slots = [idx]
                steps.append(st)
        h_last_use[s] = len(steps) - 1

    def qk_steps(c):
        idx = sidx[("K", c)]
        S = SA if c % 2 == 0 else SB
        first = len(steps)
        for s in range(8):
            for j in range(2):
                d = vr(S + 16 * j, 16)
                cc = d if s else ("0" if c < 2 else vr(NEGM, 16))
                st = Step(gof[idx], k_reads(idx, j, s),
                          lambda fr, d=d, cc=cc, s=s: [f"{MF} {d}, {vr(fr, 4)}, {vr(QF + 4 * s, 4)}, {cc}"])
                st.slots = [idx]
                steps.append(st)
        return first

    def pv_steps(c):
        idx = sidx[("V", c)]
        S = SA if c % 2 == 0 else SB
        first = len(steps)
        for kk in range(4):
            for t in range(4):
                d = vr(O + 16 * t, 16)
                cc = "0" if (c == 0 and kk == 0) else d
                pb = vr(S + 8 * kk, 4)
                st = Step(gof[idx], tr_reads("V", idx, t, 16 * kk, 8),
                          lambda fr, d=d, cc=cc, pb=pb: [f"{MF} {d}, {vr(fr, 4)}, {pb}, {cc}"])
                st.slots = [idx]
                steps.append(st)
        return first

    def max_ops(S):
        it = [(f"v_max3_f32 v{MX0}, v{S}, v{S + 1}, v{S + 2}", 1), (f"v_max3_f32 v{MX1}, v{S + 3}, v{S + 4}, v{S + 5}", 1)]
        for q in range(13):
            m = (MX0, MX1)[q % 2]
            it.append((f"v_max3_f32 v{m}, v{m}, v{S + 6 + 2 * q}, v{S + 7 + 2 * q}", 1))
        it.append((f"v_max_f32 v{MX0}, v{MX0}, v{MX1}", 1))
        return it

    def exp_ops(S):
        it = []
        for g in range(4):
            b = S + 8 * g
            for e in range(8):
                it.append((f"v_exp_f32 v{b + e}, v{b + e}", 2))
            for e in range(8):
                l = (L0, L1)[e % 2]
                it.append((f"v_add_f32 v{l}, v{l}, v{b + e}", 1))
            for e in range(4):
                it.append((f"v_cvt_pk_bf16_f32 v{b + e}, v{b + 2 * e}, v{b + 2 * e + 1}", 1))
        return it

    def xhalf_max():
        return [(f"v_mov_b32 v{MX1}, v{MX0}", 1), ("s_nop 1", 1), (f"v_permlane32_swap_b32 v{MX0}, v{MX1}", 1),
                ("s_nop 1", 1), (f"v_max_f32 v{MX0}, v{MX0}, v{MX1}", 1)]

    THR = f2u(30.0)

    def check_ops(c):
        S = SA if c % 2 == 0 else SB

        def f():
            k(f"v_cmp_lt_f32 vcc, 0x{THR:x}, v{MX0}")
            k(f"s_cbranch_vccnz attn_slow{c}")
            k.label(f"attn_back{c}")
            t = k.tail
            t.append(f"attn_slow{c}:")
            for ins, _ in xhalf_max():
                t.append("    " + ins)
            t.append(f"    v_max_f32 v{MX0}, 0, v{MX0}")
            for e in range(32):
                t.append(f"    v_sub_f32 v{S + e}, v{S + e}, v{MX0}")
            for e in range(16):
                t.append(f"    v_sub_f32 v{NEGM + e}, v{NEGM + e}, v{MX0}")
            t.append(f"    v_exp_f32_e64 v{ALPHA}, -v{MX0}")
            t.append("    s_mov_b32 s29, 1")
            t.append(f"    v_mul_f32 v{L0}, v{L0}, v{ALPHA}")
            t.append(f"    v_mul_f32 v{L1}, v{L1}, v{ALPHA}")
            t.append("    s_nop 1")
            t.append(f"    s_branch attn_back{c}")
        return [(f, 1)]

    def resc_op(c):
        def f():
            k("s_cmp_lg_u32 s29, 0")
            k(f"s_cbranch_scc1 attn_resc{c}")
            k.label(f"attn_rback{c}")
            t = k.tail
            t.append(f"attn_resc{c}:")
            t.append("    s_nop 15")
            for e in range(64):
                t.append(f"    v_mul_f32 v{O + e}, v{O + e}, v{ALPHA}")
            t.append("    s_mov_b32 s29, 0")
            t.append("    s_nop 1")
            t.append(f"    s_branch attn_rback{c}")
        return f

    q0 = qk_steps(0)

    def qconv():
        k("s_nop 15")
        if not OPT["qscale_in_h"]:
            k(f"s_mov_b32 s36, 0x{f2u(QSCALE):x}")
            for e in range(64):
                k(f"v_mul_f32 v{SA + e}, s36, v{SA + e}")
        for e in range(32):
            k(f"v_cvt_pk_bf16_f32 v{QF + e}, v{SA + 2 * e}, v{SA + 2 * e + 1}")
        k("s_nop 1")
    steps[q0].pre.append(qconv)
    q1 = qk_steps(1)
    it = max_ops(SA) + xhalf_max()
    it += [(f"v_sub_f32 v{NEGM + e}, 0, v{MX0}", 1) for e in range(16)]
    it += [(f"v_sub_f32 v{SA + e}, v{SA + e}, v{MX0}", 1) for e in range(32)]
    it += exp_ops(SA) + [("s_nop 1", 0)]
    spread(steps, q1 + 1, q1 + 15, it)
    for i in range(7):
        c = i + 1
        S = SA if c % 2 == 0 else SB
        p = pv_steps(i)
        it = []
        if c == 1:
            it += [(f"v_add_f32 v{S + e}, v{S + e}, v{NEGM}", 1) for e in range(32)]
        it += max_ops(S) + check_ops(c)
        nchk = len(it)
        it += exp_ops(S) + [("s_nop 1", 0)]
        if i < 6:
            q = qk_steps(i + 2)
            spread(steps, p + 1, q + 15, it)
            chk = it[nchk - 1][0]
            assert any(chk in steps[x].valu for x in range(p, p + 15)), c
            steps[q + 3].valu.insert(0, resc_op(c))
        else:
            spread(steps, p + 1, p + 15, it)
            steps[p + 15].valu.append(resc_op(c))
    pv_steps(7)

    k.cur_step = -1
    q0 = []
    for g in range(5):
        for f in issue_ops(g):
            if g < OPT["apro"]:
                f()
            else:
                q0.append(f)
    k.tick(1)
    k.tick_groups = {0: 2, 9: 3, 10: 4, 13: 5}
    run_stream(k, steps, FR, 8, LOOK, cover, on_sync, queue0=q0, win=OPT["awin"])
    k.tick(6)
    if not mega:
        k.wait(vm=k.vm_iss)

    k(f"v_add_f32 v{L0}, v{L0}, v{L1}")
    k(f"v_mov_b32 v{L1}, v{L0}")
    k("s_nop 1")
    k(f"v_permlane32_swap_b32 v{L0}, v{L1}")
    k("s_nop 1")
    k(f"v_add_f32 v{L0}, v{L0}, v{L1}")
    k(f"v_rcp_f32 v{L0}, v{L0}")
    k("s_add_u32 s30, s28, 4096")
    k("s_nop 12")
    for t in range(4):
        b = O + 16 * t
        for e in range(16):
            k(f"v_mul_f32 v{b + e}, v{b + e}, v{L0}")
        for sec in range(2):
            d = SA + 8 * t + 4 * sec
            k(f"v_cvt_pk_bf16_f32 v{d}, v{b + 4 * sec}, v{b + 4 * sec + 1}")
            k(f"v_cvt_pk_bf16_f32 v{d + 1}, v{b + 4 * sec + 2}, v{b + 4 * sec + 3}")
            k(f"v_cvt_pk_bf16_f32 v{d + 2}, v{b + 8 + 4 * sec}, v{b + 8 + 4 * sec + 1}")
            k(f"v_cvt_pk_bf16_f32 v{d + 3}, v{b + 8 + 4 * sec + 2}, v{b + 8 + 4 * sec + 3}")
            so = "s28" if t < 2 else "s30"
            k.vmem(f"buffer_store_dwordx4 {vr(d, 4)}, v{LIN}, s[20:23], {so} offen offset:{(t & 1) * 2048 + sec * 1024}{OPT['stmod']}")
    if mega:
        return
    finish(k)
    return k, NV, (256, 512, NSLOT * SLOT)


def gen_gemm(mode):
    k = Kern(f"{mode}_kernel")
    guard(k, 256)
    for NV in gemm_phase(k, mode, False):
        pass
    finish(k)
    return k, NV, (256, 512, 4 * 36864)


def gemm_phase(k, mode, mega):
    glu = mode == "glu"
    NM = 2 if glu else 1
    Ktot = {"oproj": 4096, "down": 4608, "glu": 576}[mode]
    NST = {"oproj": 8, "down": 9, "glu": 9}[mode]
    WROW = 9216 if glu else 1152
    KC = Ktot // 8
    SLOT = 36864
    ACC = 0
    AF = 72 * NM
    FR = AF + 64
    BA = FR + 32
    DA = BA + 4
    AV0, AV1 = DA + 5, DA + 6
    NV = DA + 7
    if glu:
        k.load_ptr(4, "wg")
        k.load_ptr(6, "wu")
    else:
        k.load_ptr(4, "wo" if mode == "oproj" else "wd")
    k.load_ptr(32, "ws")
    T = 0
    k("v_lshrrev_b32 v1, 6, v0")
    k("v_and_b32 v2, 63, v0")
    k("v_readfirstlane_b32 s24, v1")
    ln = 2
    k("s_and_b32 s34, s2, 7")
    k("s_lshr_b32 s35, s2, 3")
    if glu:
        k("s_lshr_b32 s36, s34, 1")
        k("s_lshl_b32 s36, s36, 3")
        k("s_and_b32 s37, s35, 7")
        k("s_add_u32 s36, s36, s37")
        k("s_and_b32 s37, s34, 1")
        k("s_lshl_b32 s37, s37, 2")
        k("s_lshr_b32 s38, s35, 3")
        k("s_add_u32 s37, s37, s38")
        k("s_lshl_b32 s37, s37, 3")
        k("s_add_u32 s37, s37, s24")
        k(f"s_mul_i32 s26, s37, {KC * 512}")
        k("s_and_b32 s38, s24, 3")
        k("s_mov_b32 s39, 0")
        k("s_mov_b32 s27, 0")
    else:
        k("s_lshr_b32 s40, s34, 1")
        k("s_and_b32 s36, s35, 3")
        k("s_and_b32 s37, s34, 1")
        k("s_lshl_b32 s37, s37, 3")
        k("s_lshr_b32 s38, s35, 2")
        k("s_add_u32 s37, s37, s38")
        k("s_lshl_b32 s37, s37, 2")
        k("s_and_b32 s38, s24, 3")
        k("s_add_u32 s37, s37, s38")
        k("s_lshr_b32 s39, s24, 2")
        k(f"s_mul_i32 s26, s37, {KC * 512}")
        k(f"s_mul_i32 s41, s40, {NST * 4 * 2048}")
        k("s_add_u32 s26, s26, s41")
        k("s_lshl_b32 s41, s39, 12")
        k("s_add_u32 s26, s26, s41")
        k(f"s_mul_i32 s27, s40, {NST * 128 * WROW}")
        k("s_mov_b32 s38, s24")
    k("s_mul_i32 s25, s24, 4608")
    k(f"s_mul_i32 s41, s38, {16 * WROW}")
    k("s_mul_i32 s42, s36, 288")
    k("s_add_u32 s41, s41, s42")
    k(f"s_mov_b32 s42, {WROW}")
    k("s_and_b32 s3, s36, 1")
    k("s_lshl_b32 s3, s3, 1")
    for u in range(5):
        k(f"v_add_u32 v3, {64 * u}, v{ln}")
        k("v_mul_u32_u24 v4, 3641, v3")
        k("v_lshrrev_b32 v4, 16, v4")
        k("v_mul_u32_u24 v5, 18, v4")
        k("v_sub_u32 v5, v3, v5")
        k("v_add_u32 v5, s3, v5")
        k("v_subrev_u32 v3, 18, v5")
        k("v_min_u32 v5, v3, v5")
        k("v_mul_lo_u32 v4, v4, s42")
        k("v_lshl_add_u32 v4, v5, 4, v4")
        k(f"v_add_u32 v{DA + u}, s41, v4")
        if 0 < u < 4:
            k(f"v_subrev_u32 v{DA + u}, {1024 * u}, v{DA + u}")
    k(f"v_lshrrev_b32 v3, 2, v{ln}")
    k("v_mul_u32_u24 v3, 288, v3")
    k(f"v_and_b32 v4, 3, v{ln}")
    k("v_lshl_add_u32 v3, v4, 3, v3")
    k("s_mul_i32 s41, s39, 18432")
    k(f"v_add_u32 v{BA}, s41, v3")
    for s in range(1, 4):
        k(f"v_add_u32 v{BA + s}, {s * SLOT}, v{BA}")
    k(f"v_lshrrev_b32 v3, 4, v{ln}")
    k(f"v_and_b32 v4, 15, v{ln}")
    k("v_lshlrev_b32 v4, 4, v4")
    k("v_lshl_add_u32 v3, v3, 9, v4")
    k("s_lshl_b32 s41, s39, 8")
    k(f"v_add_u32 v{AV0}, s41, v3")
    k(f"v_xor_b32 v{AV1}, 0x100, v{AV0}")
    k(f"s_mul_i32 s28, s37, {(576 if glu else 72) * 512}")
    k("s_mul_i32 s41, s36, 9")
    k("s_lshr_b32 s41, s41, 1")
    k("s_lshl_b32 s41, s41, 11")
    k("s_add_u32 s28, s28, s41")
    if not glu:
        k(f"s_mul_i32 s41, s40, {SZ_X}")
        k("s_add_u32 s28, s28, s41")
    k("s_lshl_b32 s41, s3, 10")
    k("s_cmp_lg_u32 s3, 0")
    k("s_cselect_b32 s42, 8, 8192")
    k("s_add_u32 s35, s28, s42")
    k("s_add_u32 s28, s28, s41")
    k("s_add_u32 s29, s28, 4096")
    pfw, pfops = (lambda: None), (lambda: [])
    if mode == "oproj":
        pfw, pfops = pf_setup(k, ["wg", "wu"], 576 * 4608 * 2, 324, 18, 9216, 2304, NV, 3, ("ln2_kernel", "down_kernel"))
        NV += 4
    elif glu:
        pfw, pfops = pf_setup(k, ["wd"], 576 * 4608 * 2, 324, 0, 0, 1152 * 1152, NV, 3, ("down_kernel", "code_end"))
        NV += 3
    k("s_waitcnt lgkmcnt(0)")
    pfw()
    if glu:
        k("s_cmp_ge_u32 s24, 4")
        k("s_cselect_b32 s4, s6, s4")
        k("s_cselect_b32 s5, s7, s5")
        k.srd(4, 4, 576 * 4608 * 2)
        k.srd(16, 32, SZ_X, WS_H2)
        k.srd(20, 32, 2048 * 4608 * 2, WS_HH)
    else:
        k.srd(4, 4, Ktot * 576 * 2)
        k.srd(16, 32, 2048 * Ktot * 2, WS_O if mode == "oproj" else WS_HH)
        k.srd(20, 32, NSPLIT * SZ_X, WS_PART2 if mega and mode == "down" else WS_PART)
    yield NV

    cover = {}
    a_last_use = {}
    asc = " sc1" if mega else ""
    wstep = (64 if glu else 128) * WROW
    astep = 4096 if glu else 8192

    def issue_ops(g):
        ops = []
        pos = g % 4
        for u in range(5):
            def f(u=u):
                k(f"s_add_u32 m0, s25, {pos * SLOT + (4096 if u == 4 else 0)}")
                k(f"s_add_u32 s30, s27, {g * wstep}")
                if u == 4:
                    k("s_mov_b32 exec_hi, 0")
                off = f" offset:{1024 * u}" if 0 < u < 4 else ""
                r = k.vmem(f"buffer_load_dwordx4 v{DA + u}, s[4:7], s30 offen{off} lds")
                if u == 4:
                    k("s_mov_b32 exec_hi, -1")
                return r
            ops.append(f)
        for ks in range(2):
            for mt in range(2):
                def fa(ks=ks, mt=mt):
                    if g >= 4:
                        assert k.cur_step >= a_last_use[g - 4]
                    k(f"s_add_u32 s31, s26, {g * astep}")
                    d = AF + 16 * pos + 8 * ks + 4 * mt
                    return k.vmem(f"buffer_load_dwordx4 {vr(d, 4)}, v{(AV0, AV1)[mt]}, s[16:19], s31 offen offset:{ks * 2048}{asc}")
                ops.append(fa)
        last = ops[-1]

        def fin():
            cover[g] = last()
        return ops[:-1] + [fin]

    LOOK = 6

    def on_sync(g, n):
        tgt = g + OPT["gdist"]
        pf = pfops() if OPT["pf"] and tgt == NST - 1 + (OPT["pfat"] if mode == "oproj" else 0) else []
        if tgt < 4 or tgt >= NST:
            return pf
        old = tgt - 4
        assert k.slot_last_read[old] <= k.lg_done
        return issue_ops(tgt) + pf

    MF = "v_mfma_f32_16x16x32_bf16"
    steps = []
    TAIL = OPT["gtail"] if glu else 0

    def add_step(g, ks, mat, nt, grp):
        pos = g % 4

        def rd(dst):
            return [f"ds_read_b64_tr_b16 {vr(dst + 2 * e, 2)}, v{BA + pos} offset:{mat * 18432 + (32 * ks + 16 * e) * 288 + nt * 32}"
                    for e in range(2)]

        def mf(fr):
            out = []
            for mt in range(2):
                d = vr(ACC + 72 * mat + 36 * mt + 4 * nt, 4)
                c = "0" if (g == 0 and ks == 0) else d
                out.append(f"{MF} {d}, {vr(fr, 4)}, {vr(AF + 16 * pos + 8 * ks + 4 * mt, 4)}, {c}")
            return out
        st = Step(grp, rd, mf)
        st.slots = [g]
        steps.append(st)

    def out_ops(nt, mts):
        ops = []
        for mt in mts:
            src = 36 * mt + 4 * nt
            d = 36 * mt + 8 * (nt >> 1)
            if glu:
                ops += [f"v_mul_f32 v{src + e}, v{src + e}, v{72 + src + e}" for e in range(4)]
            ops.append(f"v_cvt_pk_bf16_f32 v{d + 2 * (nt & 1)}, v{src}, v{src + 1}")
            ops.append(f"v_cvt_pk_bf16_f32 v{d + 2 * (nt & 1) + 1}, v{src + 2}, v{src + 3}")
            va = (AV0, AV1)[mt]
            if nt == 8:
                ops.append(lambda d=d, va=va: k.vmem(f"buffer_store_dwordx2 {vr(d, 2)}, v{va}, s[20:23], s35 offen{OPT['stmod']}"))
            elif nt & 1:
                so, off = ("s28", "s29")[nt >> 2], ((nt >> 1) & 1) * 2048
                ops.append(lambda d=d, va=va, so=so, off=off: k.vmem(
                    f"buffer_store_dwordx4 {vr(d, 4)}, v{va}, s[20:23], {so} offen offset:{off}{OPT['stmod']}"))
        return ops

    for g in range(NST - TAIL):
        for ks in range(2):
            for mat in range(NM):
                for nt in range(9):
                    add_step(g, ks, mat, nt, g)
        a_last_use[g] = len(steps) - 1
    if TAIL:
        for nt in range(9):
            f = len(steps)
            for g in range(NST - TAIL, NST):
                for ks in range(2):
                    for mat in range(NM):
                        add_step(g, ks, mat, nt, NST - 1)
            if nt:
                spread(steps, f + 2, len(steps) - 1, [(o, 1) for o in out_ops(nt - 1, range(2))])

    k.cur_step = -1
    q0 = []
    first = [issue_ops(g) for g in range(4)]
    if mega:
        for g in range(OPT["mw"]):
            for f in first[g][:5]:
                f()
            first[g] = first[g][5:]
    yield NV
    for g in range(4):
        for f in first[g]:
            if g < OPT["gpro"]:
                f()
            else:
                q0.append(f)
    k.tick(1)
    k.tick_groups = {0: 2, 2: 3, 4: 4, 6: 5}
    run_stream(k, steps, FR, 8, LOOK, cover, on_sync, queue0=q0, lgbar=OPT["gdist"] == 3, win=OPT["gwin"])
    k.tick(6)
    if not mega:
        k.wait(vm=k.vm_iss)

    def emit(ops):
        for o in ops:
            o() if callable(o) else k(o)

    k("s_nop 7")
    if glu:
        for nt in range(8 if TAIL else 0, 9):
            emit(out_ops(nt, range(2)))
    else:
        xb = ((NST - 4) % 4) * SLOT
        assert ((NST - 3) % 4) * SLOT == xb + SLOT
        k("v_mbcnt_lo_u32_b32 v72, -1, 0")
        k("v_mbcnt_hi_u32_b32 v72, -1, v72")
        k("v_lshlrev_b32 v73, 4, v72")
        k(f"s_mul_i32 s41, s24, 9216")
        k(f"s_add_u32 s41, s41, {xb}")
        k("v_add_u32 v74, s41, v73")
        k("s_xor_b32 s42, s24, 4")
        k(f"s_mul_i32 s42, s42, 9216")
        k(f"s_add_u32 s42, s42, {xb}")
        k("v_add_u32 v75, s42, v73")
        for nt in range(9):
            k.lds(f"ds_write_b128 v74, {vr(36 + 4 * nt, 4)} offset:{nt * 1024}")
        k("s_waitcnt lgkmcnt(0)")
        k.lg_done = k.lg_iss
        k("s_barrier")
        rs = []
        for nt in range(9):
            rs.append(k.lds(f"ds_read_b128 {vr(80 + 4 * nt, 4)}, v75 offset:{nt * 1024}"))
        for nt in range(9):
            k.wait(lg=rs[nt])
            for e in range(4):
                k(f"v_add_f32 v{4 * nt + e}, v{4 * nt + e}, v{80 + 4 * nt + e}")
            emit(out_ops(nt, [0]))
    yield NV


LDS_X1A, LDS_X1B, LDS_ST = 147456, 155648, 156672


def rebuild_tid(k):
    k("v_mbcnt_lo_u32_b32 v0, -1, 0")
    k("v_mbcnt_hi_u32_b32 v0, -1, v0")
    k("s_lshl_b32 s90, s91, 6")
    k("v_add_u32 v0, s90, v0")


def edge(k, name, kind, line0, T):
    n = {"x": 8, "m": 16, "r": 32}[kind]
    if kind == "x":
        k("s_and_b32 s90, s2, 7")
        k("s_lshl_b32 s90, s90, 2")
        k("s_lshr_b32 s62, s2, 6")
        k("s_add_u32 s90, s90, s62")
        k("s_bfe_u32 s62, s2, 0x30003")
    else:
        sh = 2 if kind == "m" else 3
        k("s_and_b32 s90, s2, 1")
        k(f"s_lshl_b32 s90, s90, {5 - sh}")
        k(f"s_lshr_b32 s62, s2, {3 + sh}")
        k("s_add_u32 s90, s90, s62")
        k("s_bfe_u32 s62, s2, 0x20001")
        k(f"s_lshl_b32 s62, s62, {sh}")
        k(f"s_bfe_u32 s43, s2, 0x{(sh << 16) | 3:x}")
        k("s_add_u32 s62, s62, s43")
    k(f"s_add_u32 s90, s90, {line0}")
    k("s_lshl_b32 s90, s90, 7")
    k("s_lshl_b32 s62, s62, 2")
    k(f"v_mov_b32 v{T}, s62")
    k(f"v_mov_b32 v{T + 1}, 1")
    k.tick(name + "a")
    k.wait_all()
    k("s_barrier")
    k.tick(name + "b")
    k("s_cmp_lg_u32 s91, 0")
    k(f"s_cbranch_scc1 {name}_nosig")
    k("s_mov_b64 exec, 1")
    k(f"buffer_store_dword v{T + 1}, v{T}, s[92:95], s90 offen sc1")
    k("s_mov_b64 exec, -1")
    k.label(f"{name}_nosig")

    def poll():
        k("s_cmp_lg_u32 s91, 0")
        k(f"s_cbranch_scc1 {name}_go")
        k(f"v_and_b32 v{T}, {n - 1}, v0")
        k(f"v_lshlrev_b32 v{T}, 2, v{T}")
        if OPT["pollmax"]:
            k(f"s_mov_b32 s62, {OPT['pollmax']}")
        k.label(f"{name}_poll")
        if OPT["pollmax"]:
            k("s_sub_u32 s62, s62, 1")
            k(f"s_cbranch_scc1 {name}_go")
        k(f"buffer_load_dword v{T + 1}, v{T}, s[92:95], s90 offen sc1")
        k("s_waitcnt vmcnt(0)")
        k(f"v_cmp_eq_u32 vcc, 0, v{T + 1}")
        k("s_nop 4")
        k(f"s_cbranch_vccnz {name}_poll")
        k.label(f"{name}_go")
        k("s_barrier")
        k.tick(name + "c")
    return poll


def row_phase(k, mode):
    ln2 = mode == "ln2"
    k.load_ptr(44, "x" if ln2 else "out")
    k.load_ptr(56, "ws")
    M, LW, LA, LB = 8, 9, 10, 11
    AL, RM, PA = (12, 15), (13, 16), (14, 17)
    U = 20
    R = [36, 88]
    X, P, G, SH, SC, V = ([r + o for r in R] for o in (0, 4, 20, 28, 36, 44))
    k(f"v_and_b32 v{M}, 7, v0")
    k(f"v_lshrrev_b32 v{U}, 3, v0")
    k("s_add_u32 s60, s91, 64")
    k(f"v_mov_b32 v{U + 1}, s60")
    k(f"v_and_b32 v{U + 2}, 56, v0")
    k(f"v_lshlrev_b32 v{U + 2}, 24, v{U + 2}")
    for j in range(2):
        ch = U + j
        k(f"v_lshlrev_b32 v{AL[j]}, 4, v{M}")
        k(f"v_lshl_add_u32 v{AL[j]}, v{ch}, 9, v{AL[j]}")
        k(f"v_lshrrev_b32 v{U + 3}, 2, v{ch}")
        k(f"v_and_b32 v{PA[j]}, 3, v{ch}")
        k(f"v_lshlrev_b32 v{PA[j]}, 4, v{PA[j]}")
        k(f"v_lshl_add_u32 v{PA[j]}, v{U + 3}, 7, v{PA[j]}")
        k(f"v_mul_u32_u24 v{RM[j]}, 1152, v{M}")
        k(f"v_lshrrev_b32 v{U + 3}, 1, v{PA[j]}")
        k(f"v_add_u32 v{RM[j]}, v{RM[j]}, v{U + 3}")
    for r in (AL[1], RM[1], PA[1]):
        k(f"v_add_u32 v{r}, v{r}, v{U + 2}")
    k(f"v_lshlrev_b32 v{LA}, 4, v0")
    k(f"v_add_u32 v{LA}, {LDS_X1A}, v{LA}")
    k("s_lshl_b32 s60, s91, 7")
    k(f"s_add_u32 s60, s60, {LDS_X1B}")
    k(f"v_lshl_add_u32 v{LB}, v{M}, 4, s60")
    k(f"v_mul_u32_u24 v{LW}, 80, v{M}")
    k(f"v_add_u32 v{LW}, {LDS_ST}, v{LW}")
    k("s_and_b32 s60, s2, 1")
    k("s_lshl_b32 s60, s60, 5")
    k("s_lshr_b32 s61, s2, 5")
    k("s_lshl_b32 s61, s61, 2")
    k("s_add_u32 s60, s60, s61")
    k("s_bfe_u32 s61, s2, 0x20001")
    k("s_add_u32 s60, s60, s61")
    k("s_bfe_u32 s62, s2, 0x20003")
    k("s_lshl_b32 s61, s60, 2")
    k("s_add_u32 s61, s61, s62")
    k("s_mul_i32 s61, s61, 9216")
    k("s_mul_i32 s60, s60, 36864")
    k("s_lshl_b32 s62, s62, 7")
    k("s_add_u32 s60, s60, s62")
    k("s_waitcnt lgkmcnt(0)")
    k.srd(44, 44, SZ_X)
    k.srd(48, 56, 3456 * 4, WS_MOD)
    k.srd(52, 56, NSPLIT * SZ_X, WS_PART if ln2 else WS_PART2)
    k.srd(56, 56, SZ_X, WS_H2)
    yield

    def unpack(dst, src):
        for i in range(4):
            k(f"v_lshlrev_b32 v{dst + 2 * i}, 16, v{src + i}")
            k(f"v_and_b32 v{dst + 2 * i + 1}, 0xffff0000, v{src + i}")

    for j in range(2):
        if ln2:
            k.vmem(f"buffer_load_dwordx2 {vr(X[j], 2)}, v{RM[j]}, s[44:47], s61 offen")
            k.vmem(f"buffer_load_dwordx2 {vr(X[j] + 2, 2)}, v{RM[j]}, s[44:47], s61 offen offset:32")
        else:
            k.lds(f"ds_read_b128 {vr(X[j], 4)}, v{(LA, LB)[j]}")
        for dst, chunk in ((G, 2), (SH, 3), (SC, 4)) if ln2 else ((G, 5),):
            k(f"s_movk_i32 s43, {chunk * 2304}")
            k.vmem(f"buffer_load_dwordx4 {vr(dst[j], 4)}, v{PA[j]}, s[48:51], s43 offen")
            k.vmem(f"buffer_load_dwordx4 {vr(dst[j] + 4, 4)}, v{PA[j]}, s[48:51], s43 offen offset:64")
    yield
    pw = {}
    for j in range(2):
        for s in range(NSPLIT):
            k(f"s_add_u32 s43, s60, {s * SZ_X}")
            pw[j, s] = k.vmem(f"buffer_load_dwordx4 {vr(P[j] + 4 * s, 4)}, v{AL[j]}, s[52:55], s43 offen sc1")
    for j in range(2):
        k.wait(vm=pw[j, 0], lg=k.lg_iss)
        unpack(V[j], P[j])
        for s in range(1, NSPLIT):
            k.wait(vm=pw[j, s])
            unpack(U, P[j] + 4 * s)
            for e in range(8):
                k(f"v_add_f32 v{V[j] + e}, v{V[j] + e}, v{U + e}")
        unpack(U, X[j])
        for e in range(8):
            k(f"v_fma_f32 v{V[j] + e}, v{V[j] + e}, v{G[j] + e}, v{U + e}")
        for i in range(4):
            k(f"v_cvt_pk_bf16_f32 v{X[j] + i}, v{V[j] + 2 * i}, v{V[j] + 2 * i + 1}")
        if not ln2:
            k.vmem(f"buffer_store_dwordx2 {vr(X[j], 2)}, v{RM[j]}, s[44:47], s61 offen")
            k.vmem(f"buffer_store_dwordx2 {vr(X[j] + 2, 2)}, v{RM[j]}, s[44:47], s61 offen offset:32")
            continue
        if j:
            k("s_mov_b64 exec, 0xff")
        k.lds(f"ds_write_b128 v{(LA, LB)[j]}, {vr(X[j], 4)}")
        if j:
            k("s_mov_b64 exec, -1")
        unpack(V[j], X[j])
    if not ln2:
        yield
        return
    A, B, T = G[0], G[0] + 1, G[0] + 2
    for e in range(8):
        k(f"v_add_f32 v{U + e}, v{V[0] + e}, v{V[1] + e}")
    for st in (4, 2, 1):
        for e in range(st):
            k(f"v_add_f32 v{A if st == 1 else U + e}, v{U + e}, v{U + e + st}")
    wave_sum8(k, A, T)
    k(f"v_mul_f32 v{A}, 0x{f2u(1.0 / 72):x}, v{A}")
    for j in range(2):
        for e in range(8):
            k(f"v_sub_f32 v{U + 8 * j + e}, v{V[j] + e}, v{A}")
    k(f"v_mul_f32 v{B}, v{U}, v{U}")
    k(f"v_mul_f32 v{T}, v{U + 8}, v{U + 8}")
    for e in range(1, 8):
        k(f"v_fmac_f32 v{B}, v{U + e}, v{U + e}")
        k(f"v_fmac_f32 v{T}, v{U + 8 + e}, v{U + 8 + e}")
    k("s_mov_b64 exec, 0xff")
    k(f"v_add_f32 v{B}, v{B}, v{T}")
    k("s_mov_b64 exec, -1")
    wave_sum8(k, B, T)
    k("s_lshl_b32 s43, s91, 3")
    k(f"v_add_u32 v{T}, s43, v{LW}")
    k(f"ds_write_b64 v{T}, {vr(A, 2)}")
    k("s_waitcnt lgkmcnt(0)")
    k("s_barrier")
    for i in range(4):
        k(f"ds_read_b128 {vr(U + 4 * i, 4)}, v{LW} offset:{16 * i}")
    k("s_waitcnt lgkmcnt(0)")
    k.lg_done = k.lg_iss
    mu = [U + 2 * i for i in range(8)]
    m2 = [U + 2 * i + 1 for i in range(8)]
    MEAN, VAR = T, T + 1
    k(f"v_add_f32 v{MEAN}, v{mu[0]}, v{mu[1]}")
    k(f"v_add_f32 v{VAR}, v{m2[0]}, v{m2[1]}")
    for i in range(2, 8):
        k(f"v_add_f32 v{MEAN}, v{MEAN}, v{mu[i]}")
        k(f"v_add_f32 v{VAR}, v{VAR}, v{m2[i]}")
    k(f"v_mul_f32 v{MEAN}, 0x{f2u(1.0 / 8):x}, v{MEAN}")
    k(f"v_mul_f32 v{VAR}, 0x{f2u(1.0 / 72):x}, v{VAR}")
    for i in range(8):
        k(f"v_sub_f32 v{mu[i]}, v{mu[i]}, v{MEAN}")
    for i in range(8):
        k(f"v_fmac_f32 v{VAR}, v{mu[i]}, v{mu[i]}")
    k(f"v_mov_b32 v{T + 2}, 0x{f2u(1e-5):x}")
    k(f"v_fmac_f32 v{T + 2}, 0x{f2u(1.0 / 8):x}, v{VAR}")
    k(f"v_rsq_f32 v{T + 2}, v{T + 2}")
    for j in range(2):
        for e in range(8):
            k(f"v_sub_f32 v{V[j] + e}, v{V[j] + e}, v{MEAN}")
        for e in range(8):
            k(f"v_mul_f32 v{V[j] + e}, v{V[j] + e}, v{T + 2}")
        for e in range(8):
            k(f"v_fma_f32 v{V[j] + e}, v{V[j] + e}, v{SC[j] + e}, v{SH[j] + e}")
        for i in range(4):
            k(f"v_cvt_pk_bf16_f32 v{P[j] + i}, v{V[j] + 2 * i}, v{V[j] + 2 * i + 1}")
        k.vmem(f"buffer_store_dwordx4 {vr(P[j], 4)}, v{AL[j]}, s[56:59], s60 offen sc1")
    yield


def gen_mega():
    k = Kern("main_kernel")
    guard(k, 256)
    k.load_ptr(92, "ws")
    k("v_lshrrev_b32 v1, 6, v0")
    k("s_nop 0")
    k("v_readfirstlane_b32 s91, v1")
    k.phase = "attn"
    gen_attn(k)
    k.srd(92, 92, N_FLAG, WS_FLAG)
    rebuild_tid(k)
    k.phase = "oproj"
    g = gemm_phase(k, "oproj", True)
    next(g)
    poll = edge(k, "e1", "x", 0, 6)
    next(g)
    poll()
    next(g)
    rebuild_tid(k)
    k.phase = "glu"
    g = gemm_phase(k, "glu", True)
    next(g)
    r = row_phase(k, "ln2")
    next(r)
    poll = edge(k, "e2", "m", 32, 6)
    next(r)
    next(g)
    poll()
    next(r)
    edge(k, "e3", "r", 48, 6)()
    NV = next(g)
    rebuild_tid(k)
    k.phase = "down"
    g = gemm_phase(k, "down", True)
    next(g)
    poll = edge(k, "e4", "x", 56, 6)
    next(g)
    poll()
    next(g)
    rebuild_tid(k)
    k.phase = "fin"
    r = row_phase(k, "fin")
    next(r)
    poll = edge(k, "e5", "m", 88, 6)
    next(r)
    poll()
    next(r)
    finish(k)
    return k, NV, (256, 512, 163840)


def main():
    out = sys.argv[1] if len(sys.argv) > 1 else f"cdna_kernels/{NAME}.s"
    for a in sys.argv[2:]:
        key, val = a.split("=")
        OPT[key] = eval(val)
    ref = open(f"cdna_kernels/{NAME}.s.ref").read().split("\n")
    head = [l for l in ref if l.startswith(";") and "@launch" not in l]
    if OPT["mega"]:
        ks = [gen_row("ln1"), gen_mega()]
    else:
        ks = [gen_row("ln1"), gen_attn(), gen_gemm("oproj"), gen_row("ln2"), gen_gemm("glu"),
              gen_gemm("down"), gen_row("fin")]
    s = "\n".join(head) + "\n"
    for k, nv, (gx, bx, lds) in ks:
        for _ in range(2 if OPT["dup"] else 1):
            s += f"; @launch kernel={k.name} grid=({gx},1,1) block=({bx},1,1) lds={lds}\n"
    s += '.amdgcn_target "amdgcn-amd-amdhsa--gfx950"\n.text\n'
    for k, nv, _ in ks:
        s += k.text()
    s += "code_end:\n    s_endpgm\n"
    s += '.section .rodata,"a"\n'
    for k, nv, _ in ks:
        s += k.desc(nv)
    open(out, "w").write(s)
    print("wrote", out, len(s), "bytes")


if __name__ == "__main__":
    main()
```

```python
import sys, struct, os

NAME = "adaLN_cond__sliding_block_cached__glu_gated_bilinear__prompt"

WS_MOD = 0x0
WS_H = 0x10000
WS_O = 0x400000
WS_PART = 0x1400000
WS_X1 = 0x2800000
WS_H2 = 0x2C00000
WS_HH = 0x3000000
WS_PART2 = 0x1E00000
WS_FLAG = 0x8000
N_FLAG = 104 * 128
WS_PROF = 0x8000000
SZ_X = 2048 * 576 * 2
SZ_PART1 = 2048 * 576 * 4

KA = dict(x=0, k=8, v=16, wq=24, wo=32, wg=48, wu=56, wd=64, c=72, wmod=80, out=88, dbg=96, ws=104)

OPT = dict(
    qscale_in_h=False,
    prof=False,
    dup=False,
    nomfma=False,
    nords=False,
    stmod=" sc1",
    gpro=2,
    gdist=3,
    apro=2,
    gwin=1.0,
    awin=1.0,
    rowst="",
    merge=True,
    xe=1,
    pw=1, pown=1, pfirst=0, prio=0,
    pfat=0,
    halfrd=False,
    pf=True,
    mega=True,
    mw=3,
    pollmax=0,
    tk="attn6,oproj2,oproj6,glu2,glu6,down2",
    gtail=3,
    cpf=0,
)


def f2u(f):
    return struct.unpack("<I", struct.pack("<f", f))[0]


def vr(a, n=1):
    return f"v{a}" if n == 1 else f"v[{a}:{a + n - 1}]"


def sr(a, n=1):
    return f"s{a}" if n == 1 else f"s[{a}:{a + n - 1}]"


class Kern:
    def __init__(self, name):
        self.name = name
        self.L = []
        self.tail = []
        self.vm_iss = 0
        self.vm_done = 0
        self.lg_iss = 0
        self.lg_done = 0

    def __call__(self, s):
        self.L.append("    " + s)

    def label(self, l):
        self.L.append(l + ":")

    def vmem(self, s):
        self(s)
        self.vm_iss += 1
        return self.vm_iss

    def lds(self, s):
        self(s)
        self.lg_iss += 1
        return self.lg_iss

    def wait(self, vm=None, lg=None):
        parts = []
        if vm is not None and vm > self.vm_done:
            n = self.vm_iss - vm
            assert 0 <= n
            if n <= 63:
                parts.append(f"vmcnt({n})")
                self.vm_done = vm
            else:
                raise AssertionError("vmcnt overflow")
        if lg is not None and lg > self.lg_done:
            n = self.lg_iss - lg
            assert 0 <= n
            if n > 15:
                n = 15
            parts.append(f"lgkmcnt({n})")
            self.lg_done = self.lg_iss - n
        if parts:
            self("s_waitcnt " + " ".join(parts))

    def wait_all(self):
        self("s_waitcnt vmcnt(0) lgkmcnt(0)")
        self.vm_done = self.vm_iss
        self.lg_done = self.lg_iss

    def load_ptr(self, sdst, key):
        self(f"s_load_dwordx2 {sr(sdst, 2)}, s[0:1], {KA[key]}")

    def srd(self, sd, sptr, size, off=0):
        if off:
            self(f"s_add_u32 s{sd}, s{sptr}, 0x{off:x}")
            self(f"s_addc_u32 s{sd + 1}, s{sptr + 1}, 0")
        elif sd != sptr:
            self(f"s_mov_b32 s{sd}, s{sptr}")
            self(f"s_mov_b32 s{sd + 1}, s{sptr + 1}")
        self(f"s_mov_b32 s{sd + 2}, 0x{size:x}")
        self(f"s_mov_b32 s{sd + 3}, 0x00020000")

    def tick(self, i):
        ph = getattr(self, "phase", None)
        if ph is not None:
            tk = OPT["tk"].split(",") + ["fin7"]
            nm = f"{ph}{i}"
            if OPT["prof"] and nm in tk:
                j = 7 if nm == "fin7" else tk.index(nm) + 1
                self(f"s_memrealtime s[{64 + 2 * j}:{65 + 2 * j}]")
            return
        if OPT["prof"]:
            self(f"s_memrealtime s[{64 + 2 * i}:{65 + 2 * i}]")
            self(f"s_memtime s[{46 + 2 * i}:{47 + 2 * i}]")
            self.nticks = max(getattr(self, "nticks", 0), i + 1)

    def prof_store(self, kidx):
        if not OPT["prof"]:
            return
        self("s_waitcnt vmcnt(0) lgkmcnt(0)")
        self.tick(7)
        self("s_load_dwordx2 s[84:85], s[0:1], 104")
        self("s_waitcnt lgkmcnt(0)")
        self.srd(88, 84, 256 * 8 * 128, WS_PROF + kidx * 256 * 8 * 128)
        self("s_lshl_b32 s86, s2, 3")
        self("s_add_u32 s86, s86, s63")
        self("s_lshl_b32 s86, s86, 7")
        self("v_mov_b32 v0, 0")
        self("s_mov_b64 exec, 1")
        for i in range(16):
            b = 64 + 2 * i if i < 8 else 46 + 2 * (i - 8)
            self(f"v_mov_b32 v2, s{b}")
            self(f"v_mov_b32 v3, s{b + 1}")
            self(f"buffer_store_dwordx2 v[2:3], v0, s[88:91], s86 offen offset:{8 * i}")
            self("s_nop 1")
        self("s_waitcnt vmcnt(0)")

    def text(self):
        out = [f".globl {self.name}", ".p2align 8", f".type {self.name},@function", f"{self.name}:"]
        out += self.L
        out += self.tail
        return "\n".join(out) + "\n"

    def desc(self, vgpr, sgpr=100):
        acc = (vgpr + 3) // 4 * 4
        return (f".p2align 6\n.amdhsa_kernel {self.name}\n"
                f"  .amdhsa_next_free_vgpr {vgpr}\n  .amdhsa_next_free_sgpr {sgpr}\n"
                f"  .amdhsa_accum_offset {acc}\n  .amdhsa_group_segment_fixed_size 0\n"
                f"  .amdhsa_kernarg_size 112\n  .amdhsa_user_sgpr_count 2\n"
                f"  .amdhsa_user_sgpr_kernarg_segment_ptr 1\n  .amdhsa_system_sgpr_workgroup_id_x 1\n"
                f".end_amdhsa_kernel\n")


def guard(k, gx):
    k(f"s_cmp_ge_u32 s2, {gx}")
    k(f"s_cbranch_scc1 {k.name}_end")
    if OPT["prof"]:
        for i in range(8):
            k(f"s_mov_b64 s[{64 + 2 * i}:{65 + 2 * i}], 0")
            k(f"s_mov_b64 s[{46 + 2 * i}:{47 + 2 * i}], 0")
        k.tick(0)
        k("v_lshrrev_b32 v1, 6, v0")
        k("s_nop 1")
        k("v_readfirstlane_b32 s63, v1")
        k("s_waitcnt lgkmcnt(0)")


KIDX = {}


def finish(k):
    k.prof_store(KIDX.setdefault(k.name, len(KIDX)))
    k.label(f"{k.name}_end")
    k("s_endpgm")


def gen_mod():
    k = Kern("mod_kernel")
    guard(k, 54)
    k.load_ptr(4, "wmod")
    k.load_ptr(8, "c")
    k.load_ptr(16, "ws")
    k("v_and_b32 v1, 7, v0")
    k("v_lshrrev_b32 v2, 3, v0")
    k("s_lshl_b32 s3, s2, 7")
    k("s_movk_i32 s20, 6912")
    k("v_mul_lo_u32 v3, v2, s20")
    k("v_lshl_add_u32 v3, v1, 4, v3")
    k("v_add_u32 v3, s3, v3")
    k("v_lshlrev_b32 v4, 1, v2")
    k("s_waitcnt lgkmcnt(0)")
    k.srd(4, 4, 576 * 3456 * 2)
    k.srd(8, 8, 576 * 2)
    k.srd(12, 16, 3456 * 4, WS_MOD)
    W = 32
    C = 8
    cs = []
    ws = []
    for i in range(18):
        cs.append(k.vmem(f"buffer_load_ushort v{C + i}, v4, s[8:11], 0 offen offset:{i * 64}"))
    for i in range(18):
        k(f"s_mov_b32 s21, {i * 32 * 6912}")
        ws.append(k.vmem(f"buffer_load_dwordx4 {vr(W + 4 * i, 4)}, v3, s[4:7], s21 offen"))
    k.wait(vm=cs[-1])
    T = 104
    k(f"s_mov_b32 s22, 0x{f2u(-1.4426950408889634):x}")
    for i in range(18):
        k(f"v_lshlrev_b32 v{C + i}, 16, v{C + i}")
    for i in range(18):
        k(f"v_mul_f32 v{T + i}, s22, v{C + i}")
    for i in range(18):
        k(f"v_exp_f32 v{T + i}, v{T + i}")
    for i in range(18):
        k(f"v_add_f32 v{T + i}, 1.0, v{T + i}")
    for i in range(18):
        k(f"v_rcp_f32 v{T + i}, v{T + i}")
    for i in range(18):
        k(f"v_mul_f32 v{C + i}, v{C + i}, v{T + i}")
    for i in range(18):
        k(f"v_cvt_pk_bf16_f32 v{C + i}, v{C + i}, v{C + i}")
    for i in range(18):
        k(f"v_and_b32 v{C + i}, 0xffff0000, v{C + i}")
    A = 104
    U = 112
    for i in range(18):
        k.wait(vm=ws[i])
        for q in range(4):
            k(f"v_lshlrev_b32 v{U + 2 * q}, 16, v{W + 4 * i + q}")
            k(f"v_and_b32 v{U + 2 * q + 1}, 0xffff0000, v{W + 4 * i + q}")
        for e in range(8):
            if i == 0:
                k(f"v_mul_f32 v{A + e}, v{C + i}, v{U + e}")
            else:
                k(f"v_fmac_f32 v{A + e}, v{C + i}, v{U + e}")
    k("v_lshlrev_b32 v5, 5, v0")
    k.lds(f"ds_write_b128 v5, {vr(A, 4)}")
    k.lds(f"ds_write_b128 v5, {vr(A + 4, 4)} offset:16")
    k("s_waitcnt lgkmcnt(0)")
    k("s_barrier")
    k("v_cmp_gt_u32 vcc, 64, v0")
    k("s_and_saveexec_b64 s[24:25], vcc")
    k(f"s_cbranch_execz {k.name}_end")
    k("v_lshlrev_b32 v5, 2, v0")
    for r in range(32):
        k(f"ds_read_b32 v{W + r}, v5 offset:{r * 256}")
    k("s_waitcnt lgkmcnt(0)")
    n = 32
    while n > 1:
        n //= 2
        for r in range(n):
            k(f"v_add_f32 v{W + r}, v{W + r}, v{W + r + n}")
    k(f"v_cvt_pk_bf16_f32 v{W}, v{W}, v{W}")
    k(f"v_and_b32 v{W}, 0xffff0000, v{W}")
    k("s_mov_b32 s26, 0")
    k("s_sub_u32 s27, s2, 9")
    k("s_cmp_lt_u32 s27, 9")
    k("s_cselect_b32 s26, 1.0, s26")
    k("s_sub_u32 s27, s2, 36")
    k("s_cmp_lt_u32 s27, 9")
    k("s_cselect_b32 s26, 1.0, s26")
    k(f"v_add_f32 v{W}, s26, v{W}")
    k(f"v_cvt_pk_bf16_f32 v{W}, v{W}, v{W}")
    k(f"v_and_b32 v{W}, 0xffff0000, v{W}")
    k("s_lshl_b32 s3, s2, 8")
    k(f"buffer_store_dword v{W}, v5, s[12:15], s3 offen")
    finish(k)
    return k, 128, (54, 256, 8192)


def dpp_sum16(k, v, t):
    for mod in ("quad_perm:[1,0,3,2]", "quad_perm:[2,3,0,1]", "row_half_mirror", "row_mirror"):
        k("s_nop 1")
        k(f"v_add_f32_dpp v{v}, v{v}, v{v} {mod} row_mask:0xf bank_mask:0xf")


def wave_sum8(k, v, t):
    k("s_nop 1")
    k(f"v_add_f32_dpp v{v}, v{v}, v{v} row_ror:8 row_mask:0xf bank_mask:0xf")
    for sw in ("v_permlane16_swap_b32", "v_permlane32_swap_b32"):
        k(f"v_mov_b32 v{t}, v{v}")
        k("s_nop 1")
        k(f"{sw} v{v}, v{t}")
        k("s_nop 1")
        k(f"v_add_f32 v{v}, v{v}, v{t}")


NSPLIT = 4


def gen_row(mode):
    k = Kern(f"{mode}_kernel")
    guard(k, 256)
    k.load_ptr(4, "x")
    k.load_ptr(6, "ws")
    k.load_ptr(28, "out")
    if mode == "ln1":
        k.load_ptr(36, "dbg")
        k.load_ptr(40, "wmod")
        k.load_ptr(44, "c")
        k.load_ptr(80, "wq")
        k.load_ptr(84, "k")
        k.load_ptr(86, "v")
        k("v_lshrrev_b32 v1, 6, v0")
        k("s_nop 0")
        k("v_readfirstlane_b32 s89, v1")
    perm = mode != "ln1"
    M, CH, AL, RM, PA, LW = 1, 2, 3, 4, 5, 6
    k(f"v_and_b32 v{M}, 7, v0")
    k(f"v_lshrrev_b32 v{CH}, 3, v0")
    k(f"v_lshlrev_b32 v{AL}, 4, v{M}")
    k(f"v_lshl_add_u32 v{AL}, v{CH}, 9, v{AL}")
    if perm:
        k(f"v_lshrrev_b32 v7, 2, v{CH}")
        k(f"v_and_b32 v{PA}, 3, v{CH}")
        k(f"v_lshlrev_b32 v{PA}, 4, v{PA}")
        k(f"v_lshl_add_u32 v{PA}, v7, 7, v{PA}")
    else:
        k(f"v_lshlrev_b32 v{PA}, 5, v{CH}")
    hi4 = 64 if perm else 16
    k(f"v_mul_u32_u24 v{RM}, 1152, v{M}")
    k(f"v_lshrrev_b32 v7, 1, v{PA}")
    k(f"v_add_u32 v{RM}, v{RM}, v7")
    k("s_lshr_b32 s30, s2, 2")
    k("s_mul_i32 s30, s30, 36864")
    k("s_and_b32 s31, s2, 3")
    k("s_lshl_b32 s31, s31, 7")
    k("s_add_u32 s30, s30, s31")
    k("s_mul_i32 s31, s2, 9216")
    k("s_waitcnt lgkmcnt(0)")
    k.srd(8, 4, SZ_X)
    k.srd(12, 6, 3456 * 4, WS_MOD)
    k.srd(16, 6, NSPLIT * SZ_X, WS_PART)
    k.srd(24, 6, SZ_X, WS_X1)
    if mode == "fin":
        k.srd(20, 28, SZ_X)
    else:
        k.srd(20, 6, SZ_X, WS_H if mode == "ln1" else WS_H2)
    X = 8
    P = 12
    G = P + 4 * NSPLIT
    SH = G + 8
    SC = SH + 8
    V = SC + 8
    U = V + 8
    NV = U + 20

    merge = mode == "ln1" and OPT["merge"]

    def ldparam(dst, chunk):
        sc = " sc1" if merge else ""
        k(f"s_movk_i32 s33, {chunk * 2304}")
        k.vmem(f"buffer_load_dwordx4 {vr(dst, 4)}, v{PA}, s[12:15], s33 offen{sc}")
        return k.vmem(f"buffer_load_dwordx4 {vr(dst + 4, 4)}, v{PA}, s[12:15], s33 offen offset:{hi4}{sc}")

    def unpack(dst, src):
        for i in range(4):
            k(f"v_lshlrev_b32 v{dst + 2 * i}, 16, v{src + i}")
            k(f"v_and_b32 v{dst + 2 * i + 1}, 0xffff0000, v{src + i}")

    if merge:
        k.srd(36, 36, 256)
        def modbr():
            k("s_cmp_lt_u32 s2, 54")
            k("s_cbranch_scc1 ln1_mod")
            k.label("ln1_main")
            mod_part(k, P)
        if not OPT["xe"]:
            modbr()
        xw = k.vmem(f"buffer_load_dwordx4 {vr(X, 4)}, v{RM}, s[8:11], s31 offen")
        if OPT["mega"]:
            k.srd(16, 6, N_FLAG, WS_FLAG)
            k(f"v_lshrrev_b32 v{U}, 5, v0")
            k(f"v_lshlrev_b32 v{U}, 16, v{U}")
            k(f"v_lshl_add_u32 v{U}, v0, 2, v{U}")
            k("s_lshl_b32 s33, s2, 7")
            k(f"v_add_u32 v{U}, s33, v{U}")
            k(f"v_mov_b32 v{U + 1}, 0")
            k.vmem(f"buffer_store_dword v{U + 1}, v{U}, s[16:19], 0 offen")
        if OPT["xe"]:
            modbr()
        pfi = row_prefetch(k, mode, U + 16)
        k.wait(vm=xw)
        pfi()
        unpack(V, X)
    elif mode == "ln1":
        xw = k.vmem(f"buffer_load_dwordx4 {vr(X, 4)}, v{RM}, s[8:11], s31 offen")
        ldparam(SH, 0)
        cw = ldparam(SC, 1)
        row_prefetch(k, mode, U + 16)()
        k.wait(vm=xw)
        unpack(V, X)
    else:
        pw = []
        for s in range(NSPLIT):
            k(f"s_add_u32 s32, s30, {s * SZ_X}")
            pw.append(k.vmem(f"buffer_load_dwordx4 {vr(P + 4 * s, 4)}, v{AL}, s[16:19], s32 offen"))
        if mode == "ln2":
            k.vmem(f"buffer_load_dwordx2 {vr(X, 2)}, v{RM}, s[8:11], s31 offen")
            k.vmem(f"buffer_load_dwordx2 {vr(X + 2, 2)}, v{RM}, s[8:11], s31 offen offset:32")
        else:
            k.vmem(f"buffer_load_dwordx4 {vr(X, 4)}, v{AL}, s[24:27], s30 offen")
        gw = ldparam(G, 2 if mode == "ln2" else 5)
        if mode == "ln2":
            ldparam(SH, 3)
            cw = ldparam(SC, 4)
        k.wait(vm=pw[0])
        unpack(V, P)
        for s in range(1, NSPLIT):
            k.wait(vm=pw[s])
            unpack(U, P + 4 * s)
            for e in range(8):
                k(f"v_add_f32 v{V + e}, v{V + e}, v{U + e}")
        k.wait(vm=gw)
        unpack(U, X)
        for e in range(8):
            k(f"v_fma_f32 v{V + e}, v{V + e}, v{G + e}, v{U + e}")
        for i in range(4):
            k(f"v_cvt_pk_bf16_f32 v{X + i}, v{V + 2 * i}, v{V + 2 * i + 1}")
        if mode == "fin":
            k.vmem(f"buffer_store_dwordx2 {vr(X, 2)}, v{RM}, s[20:23], s31 offen")
            k.vmem(f"buffer_store_dwordx2 {vr(X + 2, 2)}, v{RM}, s[20:23], s31 offen offset:32")
            finish(k)
            return k, NV, (256, 576, 0)
        k.vmem(f"buffer_store_dwordx4 {vr(X, 4)}, v{AL}, s[24:27], s30 offen{OPT['rowst']}")
        unpack(V, X)
    A, B, T = G, G + 1, G + 2
    k(f"v_add_f32 v{A}, v{V}, v{V + 1}")
    k(f"v_add_f32 v{T}, v{V + 2}, v{V + 3}")
    k(f"v_add_f32 v{T + 1}, v{V + 4}, v{V + 5}")
    k(f"v_add_f32 v{T + 2}, v{V + 6}, v{V + 7}")
    k(f"v_add_f32 v{A}, v{A}, v{T}")
    k(f"v_add_f32 v{T + 1}, v{T + 1}, v{T + 2}")
    k(f"v_add_f32 v{A}, v{A}, v{T + 1}")
    wave_sum8(k, A, T)
    k(f"v_mul_f32 v{A}, 0x{f2u(1.0 / 64):x}, v{A}")
    for e in range(8):
        k(f"v_sub_f32 v{U + e}, v{V + e}, v{A}")
    k(f"v_mul_f32 v{B}, v{U}, v{U}")
    k(f"v_mul_f32 v{T}, v{U + 1}, v{U + 1}")
    for e in range(2, 8):
        k(f"v_fmac_f32 v{(B, T)[e & 1]}, v{U + e}, v{U + e}")
    k(f"v_add_f32 v{B}, v{B}, v{T}")
    wave_sum8(k, B, T)
    k(f"v_mul_u32_u24 v{LW}, 80, v{M}")
    k("v_lshrrev_b32 v7, 6, v0")
    k(f"v_lshl_add_u32 v7, v7, 3, v{LW}")
    k(f"ds_write_b64 v7, {vr(A, 2)}")
    if merge:
        k("s_cmp_lg_u32 s89, 0")
        k("s_cbranch_scc1 ln1_go")
        k(f"v_mov_b32 v{U}, 0")
        k.label("ln1_poll")
        k(f"buffer_load_dword v{U + 1}, v{U}, s[36:39], 0 offen sc1")
        k("s_waitcnt vmcnt(0)")
        k(f"v_readfirstlane_b32 s40, v{U + 1}")
        k("s_cmp_lt_u32 s40, 18")
        k("s_cbranch_scc1 ln1_poll")
        k.label("ln1_go")
    k("s_waitcnt lgkmcnt(0)")
    k("s_barrier")
    if merge:
        ldparam(SH, 0)
        cw = ldparam(SC, 1)
    for i in range(4):
        k(f"ds_read_b128 {vr(U + 4 * i, 4)}, v{LW} offset:{16 * i}")
    k(f"ds_read_b64 {vr(A, 2)}, v{LW} offset:64")
    k("s_waitcnt lgkmcnt(0)")
    mu = [U + 2 * i for i in range(8)] + [A]
    m2 = [U + 2 * i + 1 for i in range(8)] + [B]
    MEAN, VAR = T, T + 1
    k(f"v_add_f32 v{MEAN}, v{mu[0]}, v{mu[1]}")
    k(f"v_add_f32 v{VAR}, v{m2[0]}, v{m2[1]}")
    for i in range(2, 9):
        k(f"v_add_f32 v{MEAN}, v{MEAN}, v{mu[i]}")
        k(f"v_add_f32 v{VAR}, v{VAR}, v{m2[i]}")
    k(f"v_mul_f32 v{MEAN}, 0x{f2u(1.0 / 9):x}, v{MEAN}")
    k(f"v_mul_f32 v{VAR}, 0x{f2u(1.0 / 64):x}, v{VAR}")
    for i in range(9):
        k(f"v_sub_f32 v{mu[i]}, v{mu[i]}, v{MEAN}")
    for i in range(9):
        k(f"v_fmac_f32 v{VAR}, v{mu[i]}, v{mu[i]}")
    k(f"v_mov_b32 v{T + 2}, 0x{f2u(1e-5):x}")
    k(f"v_fmac_f32 v{T + 2}, 0x{f2u(1.0 / 9):x}, v{VAR}")
    k(f"v_rsq_f32 v{T + 2}, v{T + 2}")
    for e in range(8):
        k(f"v_sub_f32 v{V + e}, v{V + e}, v{MEAN}")
    for e in range(8):
        k(f"v_mul_f32 v{V + e}, v{V + e}, v{T + 2}")
    k.wait(vm=cw)
    for e in range(8):
        k(f"v_fma_f32 v{V + e}, v{V + e}, v{SC + e}, v{SH + e}")
    if mode == "ln1" and OPT["qscale_in_h"]:
        for e in range(8):
            k(f"v_mul_f32 v{V + e}, 0x{f2u(QSCALE):x}, v{V + e}")
    for i in range(4):
        k(f"v_cvt_pk_bf16_f32 v{P + i}, v{V + 2 * i}, v{V + 2 * i + 1}")
    k.vmem(f"buffer_store_dwordx4 {vr(P, 4)}, v{AL}, s[20:23], s30 offen{OPT['rowst']}")
    k("s_waitcnt vmcnt(0)")
    finish(k)
    return k, NV, (256, 576, 4096)


def code_pf(k, first, last, VA):
    k("s_getpc_b64 s[96:97]")
    k.label(f"{k.name}_pc")
    k(f"s_add_u32 s96, s96, {first}-{k.name}_pc")
    k("s_addc_u32 s97, s97, 0")
    k(f"s_mov_b32 s98, {last}-{first}")
    k("s_lshr_b32 s99, s2, 3")
    k("s_lshl_b32 s99, s99, 12")
    k(f"v_and_b32 v{VA}, 31, v0")
    k(f"v_lshlrev_b32 v{VA}, 7, v{VA}")
    k(f"v_add_u32 v{VA}, s99, v{VA}")
    k("s_mov_b32 s99, 0x00020000")
    return f"buffer_load_dword v{VA}, v{VA}, s[96:99], 0 offen"


def row_prefetch(k, mode, T):
    if not OPT["pf"]:
        return lambda: None
    k("s_lshr_b32 s88, s2, 3")
    k("s_bfe_u32 s90, s2, 0x20001")
    k("s_mul_i32 s91, s88, 288")
    k(f"v_subrev_u32 v{T}, 64, v0")
    k(f"v_min_u32 v{T}, 287, v{T}")
    k(f"v_add_u32 v{T}, s91, v{T}")
    k(f"v_lshrrev_b32 v{T + 1}, 4, v{T}")
    k(f"v_and_b32 v{T}, 15, v{T}")
    k(f"v_lshlrev_b32 v{T}, 7, v{T}")
    k(f"v_lshl_add_u32 v{T}, v{T + 1}, 13, v{T}")
    k("s_lshl_b32 s91, s90, 11")
    k(f"v_and_b32 v{T + 1}, 127, v0")
    k(f"v_lshlrev_b32 v{T + 1}, 7, v{T + 1}")
    k("s_lshr_b32 s92, s88, 3")
    k("s_lshl_b32 s93, s90, 2")
    k("s_add_u32 s92, s92, s93")
    k("s_lshl_b32 s92, s92, 19")
    k("s_and_b32 s93, s88, 7")
    k("s_cmp_ge_u32 s89, 8")
    k("s_cselect_b32 s94, 13, 14")
    k("s_cselect_b32 s84, s86, s84")
    k("s_cselect_b32 s85, s87, s85")
    k("s_lshl_b32 s93, s93, s94")
    k("s_add_u32 s92, s92, s93")
    k(f"s_add_u32 s92, s92, {1536 * 256}")
    k("s_cmp_ge_u32 s89, 6")
    k("s_cselect_b64 vcc, -1, 0")
    k("s_cselect_b32 s91, s92, s91")
    k(f"v_cndmask_b32 v{T}, v{T}, v{T + 1}, vcc")
    k(f"s_mov_b32 s82, {576 * 4096 * 2}")
    k(f"s_cselect_b32 s82, {16 * 2048 * 256}, s82")
    k("s_cselect_b32 s80, s84, s80")
    k("s_cselect_b32 s81, s85, s81")
    k("s_mov_b32 s83, 0x00020000")
    cop = code_pf(k, "main_kernel" if OPT["mega"] else "attn_kernel", "code_end", T + 2) if OPT["cpf"] else None

    def issue():
        k("s_cmp_eq_u32 s89, 0")
        k("s_cbranch_scc1 ln1_nopf")
        if cop:
            k(cop)
        k(f"buffer_load_dword v{T + 3}, v{T}, s[80:83], s91 offen")
        k.label("ln1_nopf")
    return issue


def mod_part(main, R):
    k = Kern("tmp")
    k.label("ln1_mod")
    C, W, A, U = R, R + 8, R + 40, R + 48
    k.srd(40, 40, 576 * 3456 * 2)
    k.srd(44, 44, 576 * 2)
    k(f"v_mul_u32_u24 v{U}, 6912, v2")
    k(f"v_lshl_add_u32 v{U}, v1, 4, v{U}")
    k(f"v_lshlrev_b32 v{U + 1}, 1, v2")
    k("s_lshl_b32 s3, s2, 7")
    cs, ws = [], []
    for i in range(8):
        cs.append(k.vmem(f"buffer_load_ushort v{C + i}, v{U + 1}, s[44:47], 0 offen offset:{i * 144}"))
    for i in range(8):
        k(f"s_add_u32 s33, s3, {i * 72 * 6912}")
        ws.append(k.vmem(f"buffer_load_dwordx4 {vr(W + 4 * i, 4)}, v{U}, s[40:43], s33 offen"))
    k.wait(vm=cs[-1])
    T = A
    for ins in (f"v_lshlrev_b32 v{{c}}, 16, v{{c}}", f"v_mul_f32 v{{t}}, 0x{f2u(-1.4426950408889634):x}, v{{c}}",
                "v_exp_f32 v{t}, v{t}", "v_add_f32 v{t}, 1.0, v{t}", "v_rcp_f32 v{t}, v{t}",
                "v_mul_f32 v{c}, v{c}, v{t}", "v_cvt_pk_bf16_f32 v{c}, v{c}, v{c}", "v_and_b32 v{c}, 0xffff0000, v{c}"):
        for i in range(8):
            k(ins.format(c=C + i, t=T + i))
    for i in range(8):
        k.wait(vm=ws[i])
        for q in range(4):
            k(f"v_lshlrev_b32 v{U + 2 * q}, 16, v{W + 4 * i + q}")
            k(f"v_and_b32 v{U + 2 * q + 1}, 0xffff0000, v{W + 4 * i + q}")
        for e in range(8):
            k(f"v_mul_f32 v{A + e}, v{C + i}, v{U + e}" if i == 0 else f"v_fmac_f32 v{A + e}, v{C + i}, v{U + e}")
    for e in range(8):
        k(f"v_add_f32_dpp v{A + e}, v{A + e}, v{A + e} row_ror:8 row_mask:0xf bank_mask:0xf")
    for sw in ("v_permlane16_swap_b32", "v_permlane32_swap_b32"):
        for e in range(8):
            k(f"v_mov_b32 v{U + e}, v{A + e}")
        for e in range(8):
            k(f"{sw} v{A + e}, v{U + e}")
        for e in range(8):
            k(f"v_add_f32 v{A + e}, v{A + e}, v{U + e}")
    k("s_lshl_b32 s33, s89, 8")
    k(f"v_lshlrev_b32 v{U}, 5, v1")
    k(f"v_add_u32 v{U}, s33, v{U}")
    k(f"ds_write_b128 v{U}, {vr(A, 4)} offset:1024")
    k(f"ds_write_b128 v{U}, {vr(A + 4, 4)} offset:1040")
    k("s_waitcnt lgkmcnt(0)")
    k("s_barrier")
    k("s_cmp_lg_u32 s89, 0")
    k("s_cbranch_scc1 ln1_main")
    k(f"v_lshlrev_b32 v{U}, 2, v0")
    for r in range(9):
        k(f"ds_read_b32 v{W + r}, v{U} offset:{1024 + r * 256}")
    k("s_mov_b32 s33, 0")
    k("s_sub_u32 s3, s2, 9")
    k("s_cmp_lt_u32 s3, 9")
    k("s_cselect_b32 s33, 1.0, s33")
    k("s_sub_u32 s3, s2, 36")
    k("s_cmp_lt_u32 s3, 9")
    k("s_cselect_b32 s33, 1.0, s33")
    k("s_lshl_b32 s3, s2, 8")
    k("s_waitcnt lgkmcnt(0)")
    for a, b in ((0, 1), (2, 3), (4, 5), (6, 7), (0, 2), (4, 6), (0, 8), (0, 4)):
        k(f"v_add_f32 v{W + a}, v{W + a}, v{W + b}")
    k(f"v_cvt_pk_bf16_f32 v{W}, v{W}, v{W}")
    k(f"v_and_b32 v{W}, 0xffff0000, v{W}")
    k(f"v_add_f32 v{W}, s33, v{W}")
    k(f"v_cvt_pk_bf16_f32 v{W}, v{W}, v{W}")
    k(f"v_and_b32 v{W}, 0xffff0000, v{W}")
    k(f"buffer_store_dword v{W}, v{U}, s[12:15], s3 offen sc1")
    k("s_cmp_ge_u32 s2, 18")
    k("s_cbranch_scc1 ln1_main")
    k(f"v_mov_b32 v{U + 1}, 1")
    k("s_waitcnt vmcnt(0)")
    k("s_mov_b64 exec, 1")
    k(f"buffer_atomic_add v{U + 1}, v{U}, s[36:39], 0 offen sc1")
    k("s_mov_b64 exec, -1")
    k("s_branch ln1_main")
    main.tail += k.L


QSCALE = (128 ** -0.5) * 1.4426950408889634


class Step:
    def __init__(self, group, reads, mfma, pre_read=None, pre=None):
        self.group = group
        self.reads = reads
        self.mfma = mfma
        self.pre = pre or []
        self.valu = []
        self.slots = []


def run_stream(k, steps, FR, NFR, LOOK, group_cover, on_sync, dma_per_step=1, queue0=None, lgbar=False, win=0.0):
    synced = set()
    queue = list(queue0 or [])
    rseq = {}
    N = len(steps)
    k.slot_last_read = {}
    for n in range(-LOOK, N):
        m = n + LOOK
        if m < N:
            st = steps[m]
            if st.group not in synced:
                while queue and group_cover.get(st.group) is None:
                    queue.pop(0)()
                assert group_cover.get(st.group) is not None, st.group
                k.wait(vm=group_cover[st.group], lg=k.lg_iss if lgbar else None)
                k("s_barrier")
                if st.group in getattr(k, "tick_groups", {}):
                    k.tick(k.tick_groups[st.group])
                synced.add(st.group)
                queue += on_sync(st.group, n)
                nx = m
                while nx < N and steps[nx].group == st.group:
                    nx += 1
                span = max(1.0, (nx - m) * win)
                rate = max(len(queue) / span, 1e-9)
                credit = 1.0
            dst = FR + 4 * (m % NFR)
            last = None
            for ins in st.reads(dst):
                if ins.startswith("ds_") and (OPT["nords"] or (OPT["halfrd"] and k.name == "glu_kernel" and m % 2)):
                    last = k.lg_iss
                elif ins.startswith("ds_"):
                    last = k.lds(ins)
                else:
                    k(ins)
            rseq[m] = last
            for s in st.slots:
                k.slot_last_read[s] = last
        if n >= 0:
            st = steps[n]
            k.wait(lg=rseq[n])
            for p in st.pre:
                if callable(p):
                    p()
                else:
                    k(p)
            for ins in st.mfma(FR + 4 * (n % NFR)):
                if not OPT["nomfma"]:
                    k(ins)
            k.cur_step = n
            if win:
                while queue and credit >= 1.0 - 1e-9:
                    queue.pop(0)()
                    credit -= 1.0
                credit += rate
            else:
                for _ in range(dma_per_step):
                    if queue:
                        queue.pop(0)()
            for p in st.valu:
                if callable(p):
                    p()
                else:
                    k(p)
    assert not queue


def spread(steps, first, last, items):
    total = sum(c for _, c in items)
    n = last - first + 1
    acc = 0.0
    for ins, c in items:
        idx = first + min(n - 1, int((acc + c * 0.5) * n / total))
        steps[idx].valu.append(ins)
        acc += c


def pf_setup(k, keys, size, per_wg, lpr, rstride, xoff, VP, T, code, wave="s24"):
    per_wave = (per_wg + 7) // 8
    assert per_wave <= 64
    for j, key in enumerate(keys):
        k.load_ptr(80 + 4 * j, key)
    k(f"v_and_b32 v{VP}, 63, v0")
    k(f"v_min_u32 v{VP}, {per_wave - 1}, v{VP}")
    k("s_lshr_b32 s88, s2, 3")
    k(f"s_mul_i32 s88, s88, {per_wg}")
    k(f"s_mul_i32 s89, {wave}, {per_wave}")
    k("s_add_u32 s88, s88, s89")
    k(f"v_add_u32 v{VP}, s88, v{VP}")
    k(f"v_min_u32 v{VP}, {32 * per_wg - 1}, v{VP}")
    if lpr:
        mul = (65536 + lpr - 1) // lpr
        assert all((i * mul) >> 16 == i // lpr for i in range(32 * per_wg))
        k(f"v_mul_u32_u24 v{T}, {mul}, v{VP}")
        k(f"v_lshrrev_b32 v{T}, 16, v{T}")
        k(f"v_mul_u32_u24 v{T}, {rstride // 128 - lpr}, v{T}")
        k(f"v_add_u32 v{VP}, v{VP}, v{T}")
    k(f"v_lshlrev_b32 v{VP}, 7, v{VP}")
    k("s_bfe_u32 s88, s2, 0x20001")
    k(f"s_mul_i32 s88, s88, {xoff}")
    k(f"v_add_u32 v{VP}, s88, v{VP}")
    cop = code_pf(k, code[0], code[1], VP + 1 + len(keys)) if OPT["cpf"] >= 2 else None

    def after_wait():
        for j in range(len(keys)):
            k.srd(80 + 4 * j, 80 + 4 * j, size)

    def ops():
        return [lambda j=j: k.vmem(f"buffer_load_dword v{VP + 1 + j}, v{VP}, s[{80 + 4 * j}:{83 + 4 * j}], 0 offen")
                for j in range(len(keys))] + ([lambda: k.vmem(cop)] if cop else [])
    return after_wait, ops


def gen_attn(k=None):
    mega = k is not None
    k = k or Kern("attn_kernel")
    O, NEGM, SA, SB, QF, FR = 0, 64, 80, 112, 144, 176
    KAD, VAD, WAD = 208, 216, 220
    L0, L1, MX0, MX1, ALPHA, TMP = 224, 225, 226, 227, 228, 229
    DK0, DK1, DV, DW0, DW1, LIN = 230, 231, 232, 233, 234, 235
    NV = 236
    SLOT = 16384
    NSLOT = 10
    if not mega:
        guard(k, 256)
    k.load_ptr(4, "wq")
    k.load_ptr(8, "k")
    k.load_ptr(12, "v")
    k.load_ptr(32, "ws")
    T = FR
    k(f"v_lshrrev_b32 v{T}, 6, v0")
    k(f"v_and_b32 v{T + 1}, 63, v0")
    k(f"v_readfirstlane_b32 s24, v{T}")
    ln = T + 1
    k("s_and_b32 s34, s2, 6")
    k("s_lshl_b32 s34, s34, 2")
    k("s_bfe_u32 s35, s2, 0x30003")
    k("s_add_u32 s34, s34, s35")
    k("s_and_b32 s35, s2, 1")
    k("s_lshl_b32 s35, s35, 2")
    k("s_lshr_b32 s36, s2, 6")
    k("s_add_u32 s35, s35, s36")
    k("s_lshl_b32 s35, s35, 3")
    k("s_add_u32 s35, s35, s24")
    k("s_lshl_b32 s25, s24, 11")
    k("s_mul_i32 s26, s35, 36864")
    k("s_lshr_b32 s27, s34, 1")
    k("s_lshl_b32 s27, s27, 19")
    k(f"s_add_u32 s27, s27, {1536 * 256}")
    k("s_lshl_b32 s28, s35, 18")
    k("s_lshl_b32 s36, s34, 13")
    k("s_add_u32 s28, s28, s36")
    k("s_mov_b32 s29, 0")
    G4, P16, R8 = T + 2, T + 3, T + 4
    k(f"v_lshrrev_b32 v{G4}, 4, v{ln}")
    k(f"v_and_b32 v{P16}, 15, v{ln}")
    k(f"v_lshlrev_b32 v{LIN}, 4, v{ln}")
    k("s_lshl_b32 s36, s24, 3")
    k(f"v_add_u32 v{R8}, s36, v{G4}")
    a, b = T + 5, T + 6
    k(f"v_lshlrev_b32 v{a}, 2, v{G4}")
    k(f"v_xor_b32 v{a}, v{a}, v{P16}")
    k(f"v_lshlrev_b32 v{a}, 4, v{a}")
    k(f"v_lshl_add_u32 v{DV}, v{R8}, 8, v{a}")
    k(f"v_lshl_add_u32 v{DW0}, v{R8}, 13, v{a}")
    k("s_lshl_b32 s36, s34, 8")
    k(f"v_add_u32 v{DW0}, s36, v{DW0}")
    k(f"v_add_u32 v{DW1}, {32768 - 1024}, v{DW0}")
    k(f"v_and_b32 v{a}, 15, v{R8}")
    k(f"v_xor_b32 v{a}, v{a}, v{P16}")
    k(f"v_lshlrev_b32 v{a}, 4, v{a}")
    k(f"v_lshl_add_u32 v{DK0}, v{R8}, 8, v{a}")
    k(f"v_xor_b32 v{DK1}, 64, v{DK0}")
    HF = T + 7
    k(f"v_lshrrev_b32 v{HF}, 5, v{ln}")
    k(f"v_xor_b32 v{a}, v{HF}, v{P16}")
    k(f"v_lshlrev_b32 v{a}, 4, v{a}")
    k(f"v_and_b32 v{b}, 31, v{ln}")
    k(f"v_lshl_add_u32 v{KAD}, v{b}, 8, v{a}")
    for s in range(1, 8):
        k(f"v_xor_b32 v{KAD + s}, {s << 5}, v{KAD}")
    R, C, DS = T + 8, T + 9, T + 10
    k(f"v_bfe_u32 v{R}, v{ln}, 2, 2")
    k(f"v_and_b32 v{C}, 3, v{ln}")
    k(f"v_bfe_u32 v{DS}, v{ln}, 4, 1")
    k(f"v_mul_u32_u24 v{a}, {256 + 64}, v{R}")
    k(f"v_lshl_add_u32 v{a}, v{DS}, 5, v{a}")
    k(f"v_lshl_add_u32 v{VAD}, v{HF}, 10, v{a}")
    k(f"v_lshl_add_u32 v{VAD}, v{C}, 3, v{VAD}")
    k(f"v_lshl_add_u32 v{WAD}, v{HF}, 11, v{a}")
    k(f"v_and_b32 v{b}, 1, v{C}")
    k(f"v_lshl_add_u32 v{WAD}, v{b}, 4, v{WAD}")
    k(f"v_lshrrev_b32 v{b}, 1, v{C}")
    k(f"v_lshl_add_u32 v{WAD}, v{b}, 3, v{WAD}")
    for t in range(1, 4):
        k(f"v_xor_b32 v{VAD + t}, {t << 6}, v{VAD}")
        k(f"v_xor_b32 v{WAD + t}, {t << 6}, v{WAD}")
    k(f"v_mov_b32 v{L0}, 0")
    k(f"v_mov_b32 v{L1}, 0")
    pfw, pfops = pf_setup(k, ["wo"], 4096 * 576 * 2, 288, 0, 0, 1024 * 1152, NV, T, ("oproj_kernel", "glu_kernel"))
    NV += 3
    k("s_waitcnt lgkmcnt(0)")
    pfw()
    k.srd(4, 4, 576 * 4096 * 2)
    k.srd(8, 8, 16 * 2048 * 128 * 2)
    k.srd(12, 12, 16 * 2048 * 128 * 2)
    k.srd(16, 32, SZ_X, WS_H)
    k.srd(20, 32, 2048 * 4096 * 2, WS_O)

    slots = [("W", s) for s in range(9)] + [("K", 0), ("K", 1)]
    for i in range(6):
        slots += [("V", i), ("K", i + 2)]
    slots += [("V", 6), ("V", 7)]
    sidx = {s: i for i, s in enumerate(slots)}
    groups = [[i] for i in range(9)] + [[9 + 2 * g, 10 + 2 * g] for g in range(8)]
    gof = {}
    for g, ss in enumerate(groups):
        for s in ss:
            gof[s] = g
    cover = {}
    h_last_use = {}

    def issue_ops(g):
        ops = []
        for idx in groups[g]:
            kind, c = slots[idx]
            pos = idx % NSLOT

            def mk(kind=kind, c=c, pos=pos, u=0, idx=idx):
                def f():
                    k(f"s_add_u32 m0, s25, {pos * SLOT}")
                    if kind == "W":
                        k(f"s_mov_b32 s30, {c * 64 * 8192}")
                        va, srd = (DW0, DW1)[u], "s[4:7]"
                    else:
                        k(f"s_add_u32 s30, s27, {c * 16384}")
                        if kind == "K":
                            va, srd = (DK0, DK1)[u], "s[8:11]"
                        else:
                            va, srd = DV, "s[12:15]"
                    off = " offset:1024" if u else ""
                    return k.vmem(f"buffer_load_dwordx4 v{va}, {srd}, s30 offen{off} lds")
                return f
            ops.append(mk(u=0))
            ops.append(mk(u=1))
            if kind == "W":
                for ks in range(4):
                    def fh(c=c, ks=ks):
                        if c >= 5:
                            assert k.cur_step >= h_last_use[c - 5], (c, k.cur_step)
                        k(f"s_add_u32 s31, s26, {c * 4096}")
                        return k.vmem(f"buffer_load_dwordx4 {vr(16 * (c % 5) + 4 * ks, 4)}, v{LIN}, s[16:19], s31 offen offset:{ks * 1024}")
                    ops.append(fh)
        last = ops[-1]

        def fin():
            cover[g] = last()
        return ops[:-1] + [fin]

    def on_sync(g, n):
        tgt = g + 3
        if g < 2 or tgt >= len(groups):
            return []
        for idx in groups[tgt]:
            old = idx - NSLOT
            if old >= 0:
                assert old in k.slot_last_read and k.slot_last_read[old] <= k.lg_done, (g, idx)
                assert all(old not in st.slots for st in steps[max(0, n + LOOK):]), (g, idx)
        return issue_ops(tgt) + (pfops() if OPT["pf"] and tgt == len(groups) - 1 else [])

    bias = {"K": 0, "V": 0, "W": 0}
    setregs = {"K": (KAD, 8), "V": (VAD, 4), "W": (WAD, 4)}

    def fix_bias(kind, base):
        out = []
        if not (bias[kind] <= base and base + SLOT <= bias[kind] + 65536):
            d = base - bias[kind]
            r0, n = setregs[kind]
            for i in range(n):
                if d > 0:
                    out.append(f"v_add_u32 v{r0 + i}, {d}, v{r0 + i}")
                else:
                    out.append(f"v_subrev_u32 v{r0 + i}, {-d}, v{r0 + i}")
            bias[kind] = base
        return out

    def tr_reads(kind, idx, t, row0, estep):
        def f(dst):
            base = (idx % NSLOT) * SLOT
            out = fix_bias(kind, base)
            r0 = setregs[kind][0]
            for e in range(2):
                off = base - bias[kind] + (row0 + estep * e) * 256
                out.append(f"ds_read_b64_tr_b16 {vr(dst + 2 * e, 2)}, v{r0 + t} offset:{off}")
            return out
        return f

    def k_reads(idx, j, s):
        def f(dst):
            base = (idx % NSLOT) * SLOT
            out = fix_bias("K", base)
            off = base - bias["K"] + j * 8192
            out.append(f"ds_read_b128 {vr(dst, 4)}, v{KAD + s} offset:{off}")
            return out
        return f

    MF = "v_mfma_f32_32x32x16_bf16"
    steps = []
    LOOK = 6
    for s in range(9):
        idx = sidx[("W", s)]
        for ks in range(4):
            for t in range(4):
                d = vr(SA + 16 * t, 16)
                c = "0" if (s == 0 and ks == 0) else d
                hb = vr(16 * (s % 5) + 4 * ks, 4)
                st = Step(gof[idx], tr_reads("W", idx, t, 16 * ks, 4),
                          lambda fr, d=d, c=c, hb=hb: [f"{MF} {d}, {vr(fr, 4)}, {hb}, {c}"])
                st.slots = [idx]
                steps.append(st)
        h_last_use[s] = len(steps) - 1

    def qk_steps(c):
        idx = sidx[("K", c)]
        S = SA if c % 2 == 0 else SB
        first = len(steps)
        for s in range(8):
            for j in range(2):
                d = vr(S + 16 * j, 16)
                cc = d if s else ("0" if c < 2 else vr(NEGM, 16))
                st = Step(gof[idx], k_reads(idx, j, s),
                          lambda fr, d=d, cc=cc, s=s: [f"{MF} {d}, {vr(fr, 4)}, {vr(QF + 4 * s, 4)}, {cc}"])
                st.slots = [idx]
                steps.append(st)
        return first

    def pv_steps(c):
        idx = sidx[("V", c)]
        S = SA if c % 2 == 0 else SB
        first = len(steps)
        for kk in range(4):
            for t in range(4):
                d = vr(O + 16 * t, 16)
                cc = "0" if (c == 0 and kk == 0) else d
                pb = vr(S + 8 * kk, 4)
                st = Step(gof[idx], tr_reads("V", idx, t, 16 * kk, 8),
                          lambda fr, d=d, cc=cc, pb=pb: [f"{MF} {d}, {vr(fr, 4)}, {pb}, {cc}"])
                st.slots = [idx]
                steps.append(st)
        return first

    def max_ops(S):
        it = [(f"v_max3_f32 v{MX0}, v{S}, v{S + 1}, v{S + 2}", 1), (f"v_max3_f32 v{MX1}, v{S + 3}, v{S + 4}, v{S + 5}", 1)]
        for q in range(13):
            m = (MX0, MX1)[q % 2]
            it.append((f"v_max3_f32 v{m}, v{m}, v{S + 6 + 2 * q}, v{S + 7 + 2 * q}", 1))
        it.append((f"v_max_f32 v{MX0}, v{MX0}, v{MX1}", 1))
        return it

    def exp_ops(S):
        it = []
        for g in range(4):
            b = S + 8 * g
            for e in range(8):
                it.append((f"v_exp_f32 v{b + e}, v{b + e}", 2))
            for e in range(8):
                l = (L0, L1)[e % 2]
                it.append((f"v_add_f32 v{l}, v{l}, v{b + e}", 1))
            for e in range(4):
                it.append((f"v_cvt_pk_bf16_f32 v{b + e}, v{b + 2 * e}, v{b + 2 * e + 1}", 1))
        return it

    def xhalf_max():
        return [(f"v_mov_b32 v{MX1}, v{MX0}", 1), ("s_nop 1", 1), (f"v_permlane32_swap_b32 v{MX0}, v{MX1}", 1),
                ("s_nop 1", 1), (f"v_max_f32 v{MX0}, v{MX0}, v{MX1}", 1)]

    THR = f2u(30.0)

    def check_ops(c):
        S = SA if c % 2 == 0 else SB

        def f():
            k(f"v_cmp_lt_f32 vcc, 0x{THR:x}, v{MX0}")
            k(f"s_cbranch_vccnz attn_slow{c}")
            k.label(f"attn_back{c}")
            t = k.tail
            t.append(f"attn_slow{c}:")
            for ins, _ in xhalf_max():
                t.append("    " + ins)
            t.append(f"    v_max_f32 v{MX0}, 0, v{MX0}")
            for e in range(32):
                t.append(f"    v_sub_f32 v{S + e}, v{S + e}, v{MX0}")
            for e in range(16):
                t.append(f"    v_sub_f32 v{NEGM + e}, v{NEGM + e}, v{MX0}")
            t.append(f"    v_exp_f32_e64 v{ALPHA}, -v{MX0}")
            t.append("    s_mov_b32 s29, 1")
            t.append(f"    v_mul_f32 v{L0}, v{L0}, v{ALPHA}")
            t.append(f"    v_mul_f32 v{L1}, v{L1}, v{ALPHA}")
            t.append("    s_nop 1")
            t.append(f"    s_branch attn_back{c}")
        return [(f, 1)]

    def resc_op(c):
        def f():
            k("s_cmp_lg_u32 s29, 0")
            k(f"s_cbranch_scc1 attn_resc{c}")
            k.label(f"attn_rback{c}")
            t = k.tail
            t.append(f"attn_resc{c}:")
            t.append("    s_nop 15")
            for e in range(64):
                t.append(f"    v_mul_f32 v{O + e}, v{O + e}, v{ALPHA}")
            t.append("    s_mov_b32 s29, 0")
            t.append("    s_nop 1")
            t.append(f"    s_branch attn_rback{c}")
        return f

    q0 = qk_steps(0)

    def qconv():
        k("s_nop 15")
        if not OPT["qscale_in_h"]:
            k(f"s_mov_b32 s36, 0x{f2u(QSCALE):x}")
            for e in range(64):
                k(f"v_mul_f32 v{SA + e}, s36, v{SA + e}")
        for e in range(32):
            k(f"v_cvt_pk_bf16_f32 v{QF + e}, v{SA + 2 * e}, v{SA + 2 * e + 1}")
        k("s_nop 1")
    steps[q0].pre.append(qconv)
    q1 = qk_steps(1)
    it = max_ops(SA) + xhalf_max()
    it += [(f"v_sub_f32 v{NEGM + e}, 0, v{MX0}", 1) for e in range(16)]
    it += [(f"v_sub_f32 v{SA + e}, v{SA + e}, v{MX0}", 1) for e in range(32)]
    it += exp_ops(SA) + [("s_nop 1", 0)]
    spread(steps, q1 + 1, q1 + 15, it)
    for i in range(7):
        c = i + 1
        S = SA if c % 2 == 0 else SB
        p = pv_steps(i)
        it = []
        if c == 1:
            it += [(f"v_add_f32 v{S + e}, v{S + e}, v{NEGM}", 1) for e in range(32)]
        it += max_ops(S) + check_ops(c)
        nchk = len(it)
        it += exp_ops(S) + [("s_nop 1", 0)]
        if i < 6:
            q = qk_steps(i + 2)
            spread(steps, p + 1, q + 15, it)
            chk = it[nchk - 1][0]
            assert any(chk in steps[x].valu for x in range(p, p + 15)), c
            steps[q + 3].valu.insert(0, resc_op(c))
        else:
            spread(steps, p + 1, p + 15, it)
            steps[p + 15].valu.append(resc_op(c))
    pv_steps(7)

    k.cur_step = -1
    q0 = []
    for g in range(5):
        for f in issue_ops(g):
            if g < OPT["apro"]:
                f()
            else:
                q0.append(f)
    k.tick(1)
    k.tick_groups = {0: 2, 9: 3, 10: 4, 13: 5}
    run_stream(k, steps, FR, 8, LOOK, cover, on_sync, queue0=q0, win=OPT["awin"])
    k.tick(6)
    if not mega:
        k.wait(vm=k.vm_iss)

    k(f"v_add_f32 v{L0}, v{L0}, v{L1}")
    k(f"v_mov_b32 v{L1}, v{L0}")
    k("s_nop 1")
    k(f"v_permlane32_swap_b32 v{L0}, v{L1}")
    k("s_nop 1")
    k(f"v_add_f32 v{L0}, v{L0}, v{L1}")
    k(f"v_rcp_f32 v{L0}, v{L0}")
    k("s_add_u32 s30, s28, 4096")
    k("s_nop 12")
    for t in range(4):
        b = O + 16 * t
        for e in range(16):
            k(f"v_mul_f32 v{b + e}, v{b + e}, v{L0}")
        for sec in range(2):
            d = SA + 8 * t + 4 * sec
            k(f"v_cvt_pk_bf16_f32 v{d}, v{b + 4 * sec}, v{b + 4 * sec + 1}")
            k(f"v_cvt_pk_bf16_f32 v{d + 1}, v{b + 4 * sec + 2}, v{b + 4 * sec + 3}")
            k(f"v_cvt_pk_bf16_f32 v{d + 2}, v{b + 8 + 4 * sec}, v{b + 8 + 4 * sec + 1}")
            k(f"v_cvt_pk_bf16_f32 v{d + 3}, v{b + 8 + 4 * sec + 2}, v{b + 8 + 4 * sec + 3}")
            so = "s28" if t < 2 else "s30"
            k.vmem(f"buffer_store_dwordx4 {vr(d, 4)}, v{LIN}, s[20:23], {so} offen offset:{(t & 1) * 2048 + sec * 1024}{OPT['stmod']}")
    if mega:
        return
    finish(k)
    return k, NV, (256, 512, NSLOT * SLOT)


def gen_gemm(mode):
    k = Kern(f"{mode}_kernel")
    guard(k, 256)
    for NV in gemm_phase(k, mode, False):
        pass
    finish(k)
    return k, NV, (256, 512, 4 * 36864)


def gemm_phase(k, mode, mega):
    glu = mode == "glu"
    NM = 2 if glu else 1
    Ktot = {"oproj": 4096, "down": 4608, "glu": 576}[mode]
    NST = {"oproj": 8, "down": 9, "glu": 9}[mode]
    WROW = 9216 if glu else 1152
    KC = Ktot // 8
    SLOT = 36864
    ACC = 0
    AF = 72 * NM
    FR = AF + 64
    BA = FR + 32
    DA = BA + 4
    AV0, AV1 = DA + 5, DA + 6
    NV = DA + 7
    if glu:
        k.load_ptr(4, "wg")
        k.load_ptr(6, "wu")
    else:
        k.load_ptr(4, "wo" if mode == "oproj" else "wd")
    k.load_ptr(32, "ws")
    T = 0
    k("v_lshrrev_b32 v1, 6, v0")
    k("v_and_b32 v2, 63, v0")
    k("v_readfirstlane_b32 s24, v1")
    ln = 2
    k("s_and_b32 s34, s2, 7")
    k("s_lshr_b32 s35, s2, 3")
    if glu:
        k("s_lshr_b32 s36, s34, 1")
        k("s_lshl_b32 s36, s36, 3")
        k("s_and_b32 s37, s35, 7")
        k("s_add_u32 s36, s36, s37")
        k("s_and_b32 s37, s34, 1")
        k("s_lshl_b32 s37, s37, 2")
        k("s_lshr_b32 s38, s35, 3")
        k("s_add_u32 s37, s37, s38")
        k("s_lshl_b32 s37, s37, 3")
        k("s_add_u32 s37, s37, s24")
        k(f"s_mul_i32 s26, s37, {KC * 512}")
        k("s_and_b32 s38, s24, 3")
        k("s_mov_b32 s39, 0")
        k("s_mov_b32 s27, 0")
    else:
        k("s_lshr_b32 s40, s34, 1")
        k("s_and_b32 s36, s35, 3")
        k("s_and_b32 s37, s34, 1")
        k("s_lshl_b32 s37, s37, 3")
        k("s_lshr_b32 s38, s35, 2")
        k("s_add_u32 s37, s37, s38")
        k("s_lshl_b32 s37, s37, 2")
        k("s_and_b32 s38, s24, 3")
        k("s_add_u32 s37, s37, s38")
        k("s_lshr_b32 s39, s24, 2")
        k(f"s_mul_i32 s26, s37, {KC * 512}")
        k(f"s_mul_i32 s41, s40, {NST * 4 * 2048}")
        k("s_add_u32 s26, s26, s41")
        k("s_lshl_b32 s41, s39, 12")
        k("s_add_u32 s26, s26, s41")
        k(f"s_mul_i32 s27, s40, {NST * 128 * WROW}")
        k("s_mov_b32 s38, s24")
    k("s_mul_i32 s25, s24, 4608")
    k(f"s_mul_i32 s41, s38, {16 * WROW}")
    k("s_mul_i32 s42, s36, 288")
    k("s_add_u32 s41, s41, s42")
    k(f"s_mov_b32 s42, {WROW}")
    k("s_and_b32 s3, s36, 1")
    k("s_lshl_b32 s3, s3, 1")
    for u in range(5):
        k(f"v_add_u32 v3, {64 * u}, v{ln}")
        k("v_mul_u32_u24 v4, 3641, v3")
        k("v_lshrrev_b32 v4, 16, v4")
        k("v_mul_u32_u24 v5, 18, v4")
        k("v_sub_u32 v5, v3, v5")
        k("v_add_u32 v5, s3, v5")
        k("v_subrev_u32 v3, 18, v5")
        k("v_min_u32 v5, v3, v5")
        k("v_mul_lo_u32 v4, v4, s42")
        k("v_lshl_add_u32 v4, v5, 4, v4")
        k(f"v_add_u32 v{DA + u}, s41, v4")
        if 0 < u < 4:
            k(f"v_subrev_u32 v{DA + u}, {1024 * u}, v{DA + u}")
    k(f"v_lshrrev_b32 v3, 2, v{ln}")
    k("v_mul_u32_u24 v3, 288, v3")
    k(f"v_and_b32 v4, 3, v{ln}")
    k("v_lshl_add_u32 v3, v4, 3, v3")
    k("s_mul_i32 s41, s39, 18432")
    k(f"v_add_u32 v{BA}, s41, v3")
    for s in range(1, 4):
        k(f"v_add_u32 v{BA + s}, {s * SLOT}, v{BA}")
    k(f"v_lshrrev_b32 v3, 4, v{ln}")
    k(f"v_and_b32 v4, 15, v{ln}")
    k("v_lshlrev_b32 v4, 4, v4")
    k("v_lshl_add_u32 v3, v3, 9, v4")
    k("s_lshl_b32 s41, s39, 8")
    k(f"v_add_u32 v{AV0}, s41, v3")
    k(f"v_xor_b32 v{AV1}, 0x100, v{AV0}")
    k(f"s_mul_i32 s28, s37, {(576 if glu else 72) * 512}")
    k("s_mul_i32 s41, s36, 9")
    k("s_lshr_b32 s41, s41, 1")
    k("s_lshl_b32 s41, s41, 11")
    k("s_add_u32 s28, s28, s41")
    if not glu:
        k(f"s_mul_i32 s41, s40, {SZ_X}")
        k("s_add_u32 s28, s28, s41")
    k("s_lshl_b32 s41, s3, 10")
    k("s_cmp_lg_u32 s3, 0")
    k("s_cselect_b32 s42, 8, 8192")
    k("s_add_u32 s35, s28, s42")
    k("s_add_u32 s28, s28, s41")
    k("s_add_u32 s29, s28, 4096")
    pfw, pfops = (lambda: None), (lambda: [])
    if mode == "oproj":
        pfw, pfops = pf_setup(k, ["wg", "wu"], 576 * 4608 * 2, 324, 18, 9216, 2304, NV, 3, ("ln2_kernel", "down_kernel"))
        NV += 4
    elif glu:
        pfw, pfops = pf_setup(k, ["wd"], 576 * 4608 * 2, 324, 0, 0, 1152 * 1152, NV, 3, ("down_kernel", "code_end"))
        NV += 3
    k("s_waitcnt lgkmcnt(0)")
    pfw()
    if glu:
        k("s_cmp_ge_u32 s24, 4")
        k("s_cselect_b32 s4, s6, s4")
        k("s_cselect_b32 s5, s7, s5")
        k.srd(4, 4, 576 * 4608 * 2)
        k.srd(16, 32, SZ_X, WS_H2)
        k.srd(20, 32, 2048 * 4608 * 2, WS_HH)
    else:
        k.srd(4, 4, Ktot * 576 * 2)
        k.srd(16, 32, 2048 * Ktot * 2, WS_O if mode == "oproj" else WS_HH)
        k.srd(20, 32, NSPLIT * SZ_X, WS_PART2 if mega and mode == "down" else WS_PART)
    yield NV

    cover = {}
    a_last_use = {}
    asc = " sc1" if mega else ""
    wstep = (64 if glu else 128) * WROW
    astep = 4096 if glu else 8192

    def issue_ops(g):
        ops = []
        pos = g % 4
        for u in range(5):
            def f(u=u):
                k(f"s_add_u32 m0, s25, {pos * SLOT + (4096 if u == 4 else 0)}")
                k(f"s_add_u32 s30, s27, {g * wstep}")
                if u == 4:
                    k("s_mov_b32 exec_hi, 0")
                off = f" offset:{1024 * u}" if 0 < u < 4 else ""
                r = k.vmem(f"buffer_load_dwordx4 v{DA + u}, s[4:7], s30 offen{off} lds")
                if u == 4:
                    k("s_mov_b32 exec_hi, -1")
                return r
            ops.append(f)
        for ks in range(2):
            for mt in range(2):
                def fa(ks=ks, mt=mt):
                    if g >= 4:
                        assert k.cur_step >= a_last_use[g - 4]
                    k(f"s_add_u32 s31, s26, {g * astep}")
                    d = AF + 16 * pos + 8 * ks + 4 * mt
                    return k.vmem(f"buffer_load_dwordx4 {vr(d, 4)}, v{(AV0, AV1)[mt]}, s[16:19], s31 offen offset:{ks * 2048}{asc}")
                ops.append(fa)
        last = ops[-1]

        def fin():
            cover[g] = last()
        return ops[:-1] + [fin]

    LOOK = 6

    def on_sync(g, n):
        tgt = g + OPT["gdist"]
        pf = pfops() if OPT["pf"] and tgt == NST - 1 + (OPT["pfat"] if mode == "oproj" else 0) else []
        if tgt < 4 or tgt >= NST:
            return pf
        old = tgt - 4
        assert k.slot_last_read[old] <= k.lg_done
        return issue_ops(tgt) + pf

    MF = "v_mfma_f32_16x16x32_bf16"
    steps = []
    TAIL = OPT["gtail"] if glu else 0

    def add_step(g, ks, mat, nt, grp):
        pos = g % 4

        def rd(dst):
            return [f"ds_read_b64_tr_b16 {vr(dst + 2 * e, 2)}, v{BA + pos} offset:{mat * 18432 + (32 * ks + 16 * e) * 288 + nt * 32}"
                    for e in range(2)]

        def mf(fr):
            out = []
            for mt in range(2):
                d = vr(ACC + 72 * mat + 36 * mt + 4 * nt, 4)
                c = "0" if (g == 0 and ks == 0) else d
                out.append(f"{MF} {d}, {vr(fr, 4)}, {vr(AF + 16 * pos + 8 * ks + 4 * mt, 4)}, {c}")
            return out
        st = Step(grp, rd, mf)
        st.slots = [g]
        steps.append(st)

    def out_ops(nt, mts):
        ops = []
        for mt in mts:
            src = 36 * mt + 4 * nt
            d = 36 * mt + 8 * (nt >> 1)
            if glu:
                ops += [f"v_mul_f32 v{src + e}, v{src + e}, v{72 + src + e}" for e in range(4)]
            ops.append(f"v_cvt_pk_bf16_f32 v{d + 2 * (nt & 1)}, v{src}, v{src + 1}")
            ops.append(f"v_cvt_pk_bf16_f32 v{d + 2 * (nt & 1) + 1}, v{src + 2}, v{src + 3}")
            va = (AV0, AV1)[mt]
            if nt == 8:
                ops.append(lambda d=d, va=va: k.vmem(f"buffer_store_dwordx2 {vr(d, 2)}, v{va}, s[20:23], s35 offen{OPT['stmod']}"))
            elif nt & 1:
                so, off = ("s28", "s29")[nt >> 2], ((nt >> 1) & 1) * 2048
                ops.append(lambda d=d, va=va, so=so, off=off: k.vmem(
                    f"buffer_store_dwordx4 {vr(d, 4)}, v{va}, s[20:23], {so} offen offset:{off}{OPT['stmod']}"))
        return ops

    for g in range(NST - TAIL):
        for ks in range(2):
            for mat in range(NM):
                for nt in range(9):
                    add_step(g, ks, mat, nt, g)
        a_last_use[g] = len(steps) - 1
    if TAIL:
        for nt in range(9):
            f = len(steps)
            for g in range(NST - TAIL, NST):
                for ks in range(2):
                    for mat in range(NM):
                        add_step(g, ks, mat, nt, NST - 1)
            if nt:
                spread(steps, f + 2, len(steps) - 1, [(o, 1) for o in out_ops(nt - 1, range(2))])

    k.cur_step = -1
    q0 = []
    first = [issue_ops(g) for g in range(4)]
    if mega:
        for g in range(OPT["mw"]):
            for f in first[g][:5]:
                f()
            first[g] = first[g][5:]
    yield NV
    for g in range(4):
        for f in first[g]:
            if g < OPT["gpro"]:
                f()
            else:
                q0.append(f)
    k.tick(1)
    k.tick_groups = {0: 2, 2: 3, 4: 4, 6: 5}
    run_stream(k, steps, FR, 8, LOOK, cover, on_sync, queue0=q0, lgbar=OPT["gdist"] == 3, win=OPT["gwin"])
    k.tick(6)
    if not mega:
        k.wait(vm=k.vm_iss)

    def emit(ops):
        for o in ops:
            o() if callable(o) else k(o)

    k("s_nop 7")
    if glu:
        for nt in range(8 if TAIL else 0, 9):
            emit(out_ops(nt, range(2)))
    else:
        xb = ((NST - 4) % 4) * SLOT
        assert ((NST - 3) % 4) * SLOT == xb + SLOT
        k("v_mbcnt_lo_u32_b32 v72, -1, 0")
        k("v_mbcnt_hi_u32_b32 v72, -1, v72")
        k("v_lshlrev_b32 v73, 4, v72")
        k(f"s_mul_i32 s41, s24, 9216")
        k(f"s_add_u32 s41, s41, {xb}")
        k("v_add_u32 v74, s41, v73")
        k("s_xor_b32 s42, s24, 4")
        k(f"s_mul_i32 s42, s42, 9216")
        k(f"s_add_u32 s42, s42, {xb}")
        k("v_add_u32 v75, s42, v73")
        for nt in range(9):
            k.lds(f"ds_write_b128 v74, {vr(36 + 4 * nt, 4)} offset:{nt * 1024}")
        k("s_waitcnt lgkmcnt(0)")
        k.lg_done = k.lg_iss
        k("s_barrier")
        rs = []
        for nt in range(9):
            rs.append(k.lds(f"ds_read_b128 {vr(80 + 4 * nt, 4)}, v75 offset:{nt * 1024}"))
        for nt in range(9):
            k.wait(lg=rs[nt])
            for e in range(4):
                k(f"v_add_f32 v{4 * nt + e}, v{4 * nt + e}, v{80 + 4 * nt + e}")
            emit(out_ops(nt, [0]))
    yield NV


LDS_X1A, LDS_X1B, LDS_ST = 147456, 155648, 156672


def rebuild_tid(k):
    k("v_mbcnt_lo_u32_b32 v0, -1, 0")
    k("v_mbcnt_hi_u32_b32 v0, -1, v0")
    k("s_lshl_b32 s90, s91, 6")
    k("v_add_u32 v0, s90, v0")


def edge(k, name, kind, line0, T):
    n = {"x": 8, "m": 16, "r": 32}[kind]
    if kind == "x":
        k("s_and_b32 s90, s2, 7")
        k("s_lshl_b32 s90, s90, 2")
        k("s_lshr_b32 s62, s2, 6")
        k("s_add_u32 s90, s90, s62")
        k("s_bfe_u32 s62, s2, 0x30003")
    else:
        sh = 2 if kind == "m" else 3
        k("s_and_b32 s90, s2, 1")
        k(f"s_lshl_b32 s90, s90, {5 - sh}")
        k(f"s_lshr_b32 s62, s2, {3 + sh}")
        k("s_add_u32 s90, s90, s62")
        k("s_bfe_u32 s62, s2, 0x20001")
        k(f"s_lshl_b32 s62, s62, {sh}")
        k(f"s_bfe_u32 s43, s2, 0x{(sh << 16) | 3:x}")
        k("s_add_u32 s62, s62, s43")
    k(f"s_add_u32 s90, s90, {line0}")
    k("s_lshl_b32 s90, s90, 7")
    k("s_lshl_b32 s62, s62, 2")
    k(f"v_mov_b32 v{T}, s62")
    k(f"v_mov_b32 v{T + 1}, 1")
    k.tick(name + "a")
    k.wait_all()
    k("s_barrier")
    k.tick(name + "b")
    k("s_cmp_lg_u32 s91, 0")
    k(f"s_cbranch_scc1 {name}_nosig")
    k("s_mov_b64 exec, 1")
    k(f"buffer_store_dword v{T + 1}, v{T}, s[92:95], s90 offen sc1")
    k("s_mov_b64 exec, -1")
    k.label(f"{name}_nosig")
    pw = OPT["pw"]

    def loop(skip):
        k(f"s_cmp_lg_u32 s91, {pw}")
        k(f"s_cbranch_scc1 {skip}")
        k(f"v_and_b32 v{T}, {n - 1}, v0")
        k(f"v_lshlrev_b32 v{T}, 2, v{T}")
        if OPT["pown"]:
            k(f"v_cmp_ne_u32 vcc, s62, v{T}")
            k("s_nop 1")
            k("s_mov_b64 exec, vcc")
        if OPT["pollmax"]:
            k(f"s_mov_b32 s62, {OPT['pollmax']}")
        k.label(f"{name}_poll")
        if OPT["pollmax"]:
            k("s_sub_u32 s62, s62, 1")
            k(f"s_cbranch_scc1 {name}_out")
        k(f"buffer_load_dword v{T + 1}, v{T}, s[92:95], s90 offen sc1")
        k("s_waitcnt vmcnt(0)")
        k(f"v_cmp_eq_u32 vcc, 0, v{T + 1}")
        k("s_nop 4")
        k(f"s_cbranch_vccnz {name}_poll")
        k.label(f"{name}_out")
        k("s_mov_b64 exec, -1")

    if OPT["pfirst"]:
        loop(f"{name}_early")
        k("s_barrier")
        k.label(f"{name}_early")

    def poll():
        if OPT["pfirst"]:
            k(f"s_cmp_eq_u32 s91, {pw}")
            k(f"s_cbranch_scc1 {name}_go")
            k("s_barrier")
            k.label(f"{name}_go")
        else:
            loop(f"{name}_go")
            k.label(f"{name}_go")
            k("s_barrier")
        k.tick(name + "c")
    return poll


def row_phase(k, mode):
    ln2 = mode == "ln2"
    k.load_ptr(44, "x" if ln2 else "out")
    k.load_ptr(56, "ws")
    M, LW, LA, LB = 8, 9, 10, 11
    AL, RM, PA = (12, 15), (13, 16), (14, 17)
    U = 20
    R = [36, 88]
    X, P, G, SH, SC, V = ([r + o for r in R] for o in (0, 4, 20, 28, 36, 44))
    k(f"v_and_b32 v{M}, 7, v0")
    k(f"v_lshrrev_b32 v{U}, 3, v0")
    k("s_add_u32 s60, s91, 64")
    k(f"v_mov_b32 v{U + 1}, s60")
    k(f"v_and_b32 v{U + 2}, 56, v0")
    k(f"v_lshlrev_b32 v{U + 2}, 24, v{U + 2}")
    for j in range(2):
        ch = U + j
        k(f"v_lshlrev_b32 v{AL[j]}, 4, v{M}")
        k(f"v_lshl_add_u32 v{AL[j]}, v{ch}, 9, v{AL[j]}")
        k(f"v_lshrrev_b32 v{U + 3}, 2, v{ch}")
        k(f"v_and_b32 v{PA[j]}, 3, v{ch}")
        k(f"v_lshlrev_b32 v{PA[j]}, 4, v{PA[j]}")
        k(f"v_lshl_add_u32 v{PA[j]}, v{U + 3}, 7, v{PA[j]}")
        k(f"v_mul_u32_u24 v{RM[j]}, 1152, v{M}")
        k(f"v_lshrrev_b32 v{U + 3}, 1, v{PA[j]}")
        k(f"v_add_u32 v{RM[j]}, v{RM[j]}, v{U + 3}")
    for r in (AL[1], RM[1], PA[1]):
        k(f"v_add_u32 v{r}, v{r}, v{U + 2}")
    k(f"v_lshlrev_b32 v{LA}, 4, v0")
    k(f"v_add_u32 v{LA}, {LDS_X1A}, v{LA}")
    k("s_lshl_b32 s60, s91, 7")
    k(f"s_add_u32 s60, s60, {LDS_X1B}")
    k(f"v_lshl_add_u32 v{LB}, v{M}, 4, s60")
    k(f"v_mul_u32_u24 v{LW}, 80, v{M}")
    k(f"v_add_u32 v{LW}, {LDS_ST}, v{LW}")
    k("s_and_b32 s60, s2, 1")
    k("s_lshl_b32 s60, s60, 5")
    k("s_lshr_b32 s61, s2, 5")
    k("s_lshl_b32 s61, s61, 2")
    k("s_add_u32 s60, s60, s61")
    k("s_bfe_u32 s61, s2, 0x20001")
    k("s_add_u32 s60, s60, s61")
    k("s_bfe_u32 s62, s2, 0x20003")
    k("s_lshl_b32 s61, s60, 2")
    k("s_add_u32 s61, s61, s62")
    k("s_mul_i32 s61, s61, 9216")
    k("s_mul_i32 s60, s60, 36864")
    k("s_lshl_b32 s62, s62, 7")
    k("s_add_u32 s60, s60, s62")
    k("s_waitcnt lgkmcnt(0)")
    k.srd(44, 44, SZ_X)
    k.srd(48, 56, 3456 * 4, WS_MOD)
    k.srd(52, 56, NSPLIT * SZ_X, WS_PART if ln2 else WS_PART2)
    k.srd(56, 56, SZ_X, WS_H2)
    yield

    def unpack(dst, src):
        for i in range(4):
            k(f"v_lshlrev_b32 v{dst + 2 * i}, 16, v{src + i}")
            k(f"v_and_b32 v{dst + 2 * i + 1}, 0xffff0000, v{src + i}")

    for j in range(2):
        if ln2:
            k.vmem(f"buffer_load_dwordx2 {vr(X[j], 2)}, v{RM[j]}, s[44:47], s61 offen")
            k.vmem(f"buffer_load_dwordx2 {vr(X[j] + 2, 2)}, v{RM[j]}, s[44:47], s61 offen offset:32")
        else:
            k.lds(f"ds_read_b128 {vr(X[j], 4)}, v{(LA, LB)[j]}")
        for dst, chunk in ((G, 2), (SH, 3), (SC, 4)) if ln2 else ((G, 5),):
            k(f"s_movk_i32 s43, {chunk * 2304}")
            k.vmem(f"buffer_load_dwordx4 {vr(dst[j], 4)}, v{PA[j]}, s[48:51], s43 offen")
            k.vmem(f"buffer_load_dwordx4 {vr(dst[j] + 4, 4)}, v{PA[j]}, s[48:51], s43 offen offset:64")
    yield
    pw = {}
    for j in range(2):
        for s in range(NSPLIT):
            k(f"s_add_u32 s43, s60, {s * SZ_X}")
            pw[j, s] = k.vmem(f"buffer_load_dwordx4 {vr(P[j] + 4 * s, 4)}, v{AL[j]}, s[52:55], s43 offen sc1")
    for j in range(2):
        k.wait(vm=pw[j, 0], lg=k.lg_iss)
        unpack(V[j], P[j])
        for s in range(1, NSPLIT):
            k.wait(vm=pw[j, s])
            unpack(U, P[j] + 4 * s)
            for e in range(8):
                k(f"v_add_f32 v{V[j] + e}, v{V[j] + e}, v{U + e}")
        unpack(U, X[j])
        for e in range(8):
            k(f"v_fma_f32 v{V[j] + e}, v{V[j] + e}, v{G[j] + e}, v{U + e}")
        for i in range(4):
            k(f"v_cvt_pk_bf16_f32 v{X[j] + i}, v{V[j] + 2 * i}, v{V[j] + 2 * i + 1}")
        if not ln2:
            k.vmem(f"buffer_store_dwordx2 {vr(X[j], 2)}, v{RM[j]}, s[44:47], s61 offen")
            k.vmem(f"buffer_store_dwordx2 {vr(X[j] + 2, 2)}, v{RM[j]}, s[44:47], s61 offen offset:32")
            continue
        if j:
            k("s_mov_b64 exec, 0xff")
        k.lds(f"ds_write_b128 v{(LA, LB)[j]}, {vr(X[j], 4)}")
        if j:
            k("s_mov_b64 exec, -1")
        unpack(V[j], X[j])
    if not ln2:
        yield
        return
    A, B, T = G[0], G[0] + 1, G[0] + 2
    for e in range(8):
        k(f"v_add_f32 v{U + e}, v{V[0] + e}, v{V[1] + e}")
    for st in (4, 2, 1):
        for e in range(st):
            k(f"v_add_f32 v{A if st == 1 else U + e}, v{U + e}, v{U + e + st}")
    wave_sum8(k, A, T)
    k(f"v_mul_f32 v{A}, 0x{f2u(1.0 / 72):x}, v{A}")
    for j in range(2):
        for e in range(8):
            k(f"v_sub_f32 v{U + 8 * j + e}, v{V[j] + e}, v{A}")
    k(f"v_mul_f32 v{B}, v{U}, v{U}")
    k(f"v_mul_f32 v{T}, v{U + 8}, v{U + 8}")
    for e in range(1, 8):
        k(f"v_fmac_f32 v{B}, v{U + e}, v{U + e}")
        k(f"v_fmac_f32 v{T}, v{U + 8 + e}, v{U + 8 + e}")
    k("s_mov_b64 exec, 0xff")
    k(f"v_add_f32 v{B}, v{B}, v{T}")
    k("s_mov_b64 exec, -1")
    wave_sum8(k, B, T)
    k("s_lshl_b32 s43, s91, 3")
    k(f"v_add_u32 v{T}, s43, v{LW}")
    k(f"ds_write_b64 v{T}, {vr(A, 2)}")
    k("s_waitcnt lgkmcnt(0)")
    k("s_barrier")
    for i in range(4):
        k(f"ds_read_b128 {vr(U + 4 * i, 4)}, v{LW} offset:{16 * i}")
    k("s_waitcnt lgkmcnt(0)")
    k.lg_done = k.lg_iss
    mu = [U + 2 * i for i in range(8)]
    m2 = [U + 2 * i + 1 for i in range(8)]
    MEAN, VAR = T, T + 1
    k(f"v_add_f32 v{MEAN}, v{mu[0]}, v{mu[1]}")
    k(f"v_add_f32 v{VAR}, v{m2[0]}, v{m2[1]}")
    for i in range(2, 8):
        k(f"v_add_f32 v{MEAN}, v{MEAN}, v{mu[i]}")
        k(f"v_add_f32 v{VAR}, v{VAR}, v{m2[i]}")
    k(f"v_mul_f32 v{MEAN}, 0x{f2u(1.0 / 8):x}, v{MEAN}")
    k(f"v_mul_f32 v{VAR}, 0x{f2u(1.0 / 72):x}, v{VAR}")
    for i in range(8):
        k(f"v_sub_f32 v{mu[i]}, v{mu[i]}, v{MEAN}")
    for i in range(8):
        k(f"v_fmac_f32 v{VAR}, v{mu[i]}, v{mu[i]}")
    k(f"v_mov_b32 v{T + 2}, 0x{f2u(1e-5):x}")
    k(f"v_fmac_f32 v{T + 2}, 0x{f2u(1.0 / 8):x}, v{VAR}")
    k(f"v_rsq_f32 v{T + 2}, v{T + 2}")
    for j in range(2):
        for e in range(8):
            k(f"v_sub_f32 v{V[j] + e}, v{V[j] + e}, v{MEAN}")
        for e in range(8):
            k(f"v_mul_f32 v{V[j] + e}, v{V[j] + e}, v{T + 2}")
        for e in range(8):
            k(f"v_fma_f32 v{V[j] + e}, v{V[j] + e}, v{SC[j] + e}, v{SH[j] + e}")
        for i in range(4):
            k(f"v_cvt_pk_bf16_f32 v{P[j] + i}, v{V[j] + 2 * i}, v{V[j] + 2 * i + 1}")
        k.vmem(f"buffer_store_dwordx4 {vr(P[j], 4)}, v{AL[j]}, s[56:59], s60 offen sc1")
    yield


def gen_mega():
    k = Kern("main_kernel")
    guard(k, 256)
    k.load_ptr(92, "ws")
    k("v_lshrrev_b32 v1, 6, v0")
    k("s_nop 0")
    k("v_readfirstlane_b32 s91, v1")
    k.phase = "attn"

    def prio(tag):
        k("s_cmp_lt_u32 s91, 4")
        k(f"s_cbranch_scc1 prio_{tag}")
        k("s_setprio 2")
        k.label(f"prio_{tag}")
    if OPT["prio"] & 1:
        k("s_nop 3")
        prio("a")
    gen_attn(k)
    if OPT["prio"] == 1:
        k("s_setprio 0")
    if OPT["prio"] == 2:
        prio("g")
    k.srd(92, 92, N_FLAG, WS_FLAG)
    rebuild_tid(k)
    k.phase = "oproj"
    g = gemm_phase(k, "oproj", True)
    next(g)
    poll = edge(k, "e1", "x", 0, 6)
    next(g)
    poll()
    next(g)
    rebuild_tid(k)
    k.phase = "glu"
    g = gemm_phase(k, "glu", True)
    next(g)
    r = row_phase(k, "ln2")
    next(r)
    poll = edge(k, "e2", "m", 32, 6)
    next(r)
    next(g)
    poll()
    next(r)
    edge(k, "e3", "r", 48, 6)()
    NV = next(g)
    rebuild_tid(k)
    k.phase = "down"
    g = gemm_phase(k, "down", True)
    next(g)
    poll = edge(k, "e4", "x", 56, 6)
    next(g)
    poll()
    next(g)
    rebuild_tid(k)
    k.phase = "fin"
    r = row_phase(k, "fin")
    next(r)
    poll = edge(k, "e5", "m", 88, 6)
    next(r)
    poll()
    next(r)
    finish(k)
    return k, NV, (256, 512, 163840)


def main():
    out = sys.argv[1] if len(sys.argv) > 1 else f"cdna_kernels/{NAME}.s"
    for a in sys.argv[2:]:
        key, val = a.split("=")
        OPT[key] = eval(val)
    ref = open(f"cdna_kernels/{NAME}.s.ref").read().split("\n")
    head = [l for l in ref if l.startswith(";") and "@launch" not in l]
    if OPT["mega"]:
        ks = [gen_row("ln1"), gen_mega()]
    else:
        ks = [gen_row("ln1"), gen_attn(), gen_gemm("oproj"), gen_row("ln2"), gen_gemm("glu"),
              gen_gemm("down"), gen_row("fin")]
    s = "\n".join(head) + "\n"
    for k, nv, (gx, bx, lds) in ks:
        for _ in range(2 if OPT["dup"] else 1):
            s += f"; @launch kernel={k.name} grid=({gx},1,1) block=({bx},1,1) lds={lds}\n"
    s += '.amdgcn_target "amdgcn-amd-amdhsa--gfx950"\n.text\n'
    for k, nv, _ in ks:
        s += k.text()
    s += "code_end:\n    s_endpgm\n"
    s += '.section .rodata,"a"\n'
    for k, nv, _ in ks:
        s += k.desc(nv)
    open(out, "w").write(s)
    print("wrote", out, len(s), "bytes")


if __name__ == "__main__":
    main()
```
